```python
import torch

def _softmax(x, axis=-1):
    return torch.softmax(x, dim=axis)

def _gelu(x):
    return torch.nn.functional.gelu(x, approximate='tanh')

def _silu(x):
    return torch.nn.functional.silu(x)

def _sigmoid(x):
    return torch.sigmoid(x)

def _layernorm(x, axis=-1, eps=1e-05):
    m = x.mean(dim=axis, keepdim=True)
    v = x.var(dim=axis, keepdim=True, unbiased=False)
    return (x - m) / torch.sqrt(v + eps)

def _scatter_add(tgt, idx, src, axis=0):
    return tgt.clone().index_add_(axis, idx, src)

def _segment_sum(src, seg, n):
    out = torch.zeros((n,) + src.shape[1:], dtype=src.dtype)
    return out.index_add_(0, seg, src)

def _pad(x, pw):
    flat = tuple((v for pair in reversed(pw) for v in pair))
    return torch.nn.functional.pad(x, flat)
kernel_name = 'recurrent_scan__memory_aug_recurrent_mem_tr__mixer_channel_mlp__prompt'

def setup_inputs():

    _w = lambda a: (lambda t: t.to(torch.bfloat16) if t.is_floating_point() else t)(torch.as_tensor(a))

    def _A_setup():
        B, S, Dm = (1, 2048, 512)
        H, Dh = (32, 128)
        M, seg = (8, 32)
        seg = min(seg, S)
        S = S // seg * seg
        return {'x': _w((lambda *s: torch.randn(*s, dtype=torch.bfloat16) * 0.05)(B, S, Dm)), 'mem0': _w((lambda *s: torch.randn(*s, dtype=torch.bfloat16) * 0.8)(B, M, Dm)), 'Wq': _w((lambda *s: torch.randn(*s, dtype=torch.bfloat16) * 0.8)(Dm, H, Dh) * Dm ** (-0.5)), 'Wk': _w((lambda *s: torch.randn(*s, dtype=torch.bfloat16) * 0.8)(Dm, H, Dh) * Dm ** (-0.5)), 'Wv': _w((lambda *s: torch.randn(*s, dtype=torch.bfloat16) * 0.8)(Dm, H, Dh) * Dm ** (-0.5)), 'Wo': _w((lambda *s: torch.randn(*s, dtype=torch.bfloat16) * 0.8)(H, Dh, Dm) * (H * Dh) ** (-0.5)), 'seg_len': seg}
    _A_in = _A_setup()

    def _B_setup():
        B, S, D, F = (1, 2048, 512, 1792)
        return {'x': _w((lambda *s: torch.randn(*s, dtype=torch.bfloat16) * 0.05)(B, S, D)), 'w1': _w((lambda *s: torch.randn(*s, dtype=torch.bfloat16) * 0.8)(D, F) * D ** (-0.5)), 'b1': _w((lambda *s: torch.randn(*s, dtype=torch.bfloat16) * 0.4)(F)), 'w2': _w((lambda *s: torch.randn(*s, dtype=torch.bfloat16) * 0.2)(F, D) * F ** (-0.5)), 'b2': _w((lambda *s: torch.randn(*s, dtype=torch.bfloat16) * 0.2)(D))}
    _B_in = _B_setup()
    return {'A_x': _A_in['x'], 'A_mem0': _A_in['mem0'], 'A_Wq': _A_in['Wq'], 'A_Wk': _A_in['Wk'], 'A_Wv': _A_in['Wv'], 'A_Wo': _A_in['Wo'], 'A_seg_len': _A_in['seg_len'], 'B_x': _B_in['x'], 'B_w1': _B_in['w1'], 'B_b1': _B_in['b1'], 'B_w2': _B_in['w2'], 'B_b2': _B_in['b2']}

def reference(A_x, A_mem0, A_Wq, A_Wk, A_Wv, A_Wo, A_seg_len, B_x, B_w1, B_b1, B_w2, B_b2):

    def _A_ref(x, mem0, Wq, Wk, Wv, Wo, seg_len):
        B, S, Dm = x.shape
        H, Dh = (Wq.shape[1], Wq.shape[2])
        M = mem0.shape[1]
        scale = Dh ** (-0.5)
        n_seg = S // seg_len
        L = M + seg_len
        idx = torch.arange(L)
        mask = (idx[:, None] < M) | (idx[:, None] >= idx[None, :])
        mem = mem0
        outs = []
        for s in range(n_seg):
            xs = x[:, s * seg_len:(s + 1) * seg_len, :].clone()
            h = torch.concatenate([mem, xs], axis=1)
            q = torch.einsum('btd,dhe->bhte', h, Wq)
            k = torch.einsum('btd,dhe->bhte', h, Wk)
            v = torch.einsum('btd,dhe->bhte', h, Wv)
            scores = torch.einsum('bhqe,bhke->bhqk', q, k) * scale
            scores = torch.where(mask[None, None], scores, -1000000000.0)
            p = _softmax(scores, axis=-1)
            o = torch.einsum('bhqk,bhke->bhqe', p, v)
            o = torch.einsum('bhte,hed->btd', o, Wo)
            mem = o[:, :M, :].clone()
            outs.append(o[:, M:, :])
        return torch.concatenate(outs, axis=1)

    def _B_ref(x, w1, b1, w2, b2):
        y = _layernorm(x, axis=-1)
        h = _gelu(torch.einsum('bsd,df->bsf', y, w1) + b1)
        return torch.einsum('bsf,fd->bsd', h, w2) + b2
    x = A_x
    xn = _layernorm(x, axis=-1)
    s = _A_ref(xn, A_mem0, A_Wq, A_Wk, A_Wv, A_Wo, A_seg_len)
    g = _silu(_B_ref(xn, B_w1, B_b1, B_w2, B_b2))
    return x + s * g
```

```python
import re

def R(kind, a, n=1):
    return "%s%d" % (kind, a) if n == 1 else "%s[%d:%d]" % (kind, a, a + n - 1)
def v(a, n=1): return R("v", a, n)
def a(x, n=1): return R("a", x, n)
def s(x, n=1): return R("s", x, n)
def u(x, n=1):
    return v(x, n) if x < 256 else a(x - 256, n)

_reg = re.compile(r"^(-|\|)?(?:abs\()?([vas])(?:(\d+)|\[(\d+):(\d+)\])\)?\|?$")
def regs_of(tok):
    tok = tok.strip()
    if tok in ("vcc", "vcc_lo", "vcc_hi"): return {("vcc", 0)}
    if tok in ("exec", "exec_lo", "exec_hi"): return {("exec", 0)}
    if tok == "m0": return {("m0", 0)}
    m = _reg.match(tok)
    if not m: return set()
    k = m.group(2)
    if m.group(3) is not None: return {(k, int(m.group(3)))}
    return {(k, i) for i in range(int(m.group(4)), int(m.group(5)) + 1)}

TRANS = ("v_exp_", "v_log_", "v_rcp_", "v_rsq_", "v_sqrt_", "v_sin_", "v_cos_")
class Ins:
    def __init__(self, text):
        self.text = text
        t = text.split(";")[0].strip()
        parts = t.split(None, 1)
        self.op = op = parts[0]
        rest = parts[1] if len(parts) > 1 else ""
        toks = [x.strip() for x in re.split(r",(?![^\[]*\])", rest)] if rest else []
        mods = ""
        if toks:
            last = toks[-1].split(None, 1)
            if len(last) > 1: toks[-1], mods = last[0], last[1]
        self.mods = mods
        o = [regs_of(x) for x in toks]
        U = lambda l: set().union(*l) if l else set()
        self.cls = "other"; self.rd = set(); self.wr = set(); self.srcc = set(); self.ab = set()
        self.passes = 0; self.wide_store = set(); self.states = 1
        self.dpp = False; self.trans = False; self.perm = False; self.lane = False
        if op.startswith("v_mfma") or op.startswith("v_smfmac"):
            self.cls = "mfma"; self.passes = 8 if "32x32" in op else 4
            self.wr = o[0]
            if op.startswith("v_smfmac"): self.ab = o[1] | o[2] | o[3]; self.srcc = o[0]
            else: self.ab = o[1] | o[2]; self.srcc = o[3]
            self.rd = self.ab | self.srcc
            self.sparse = op.startswith("v_smfmac")
        elif op.startswith("v_"):
            self.cls = "valu"; self.wr = set(o[0]); self.rd = U(o[1:])
            self.dpp = "_dpp" in op; self.trans = op.startswith(TRANS)
            if "permlane" in op: self.perm = True; self.rd = o[0] | o[1]; self.wr = o[0] | o[1]
            if op.startswith(("v_fmac", "v_dot2c", "v_pk_fmac", "v_writelane")) or self.dpp or "_sdwa" in op: self.rd |= o[0]
            if "_co_" in op: self.wr |= o[1]; self.rd = U(o[2:])
            if op.startswith(("v_readfirstlane", "v_readlane")): self.lane = True
            if op.startswith("v_cmpx"): self.wr |= {("exec", 0)}
        elif op.startswith("ds_"):
            self.cls = "ds"
            if op.startswith(("ds_read", "ds_bpermute", "ds_permute", "ds_swizzle")): self.wr = o[0]; self.rd = U(o[1:])
            else: self.rd = U(o)
        elif op.startswith(("buffer_", "global_")):
            self.cls = "vm"
            lds = " lds" in " " + mods or "load_lds" in op
            if lds: self.rd = U(o) | {("m0", 0)}; self.ldsdma = True
            elif "_load" in op: self.wr = o[0]; self.rd = U(o[1:])
            elif "atomic" in op and "sc0" in mods:
                self.wr = o[0]; self.rd = U(o) if op.startswith("buffer") else U(o[1:])
            else:
                self.rd = U(o)
                if "x4" in op or "x3" in op: self.wide_store = o[0] if op.startswith("buffer") else o[1]
        elif op.startswith(("s_load", "s_memtime", "s_memrealtime", "s_atomic", "s_buffer_load")):
            self.cls = "smem"; self.wr = o[0]; self.rd = U(o[1:])
        elif op == "s_nop": self.states = int(toks[0], 0) + 1
        elif op.startswith("s_"):
            self.cls = "salu"
            if op.startswith(("s_cmp", "s_cbranch", "s_branch", "s_waitcnt", "s_barrier", "s_bitcmp", "s_sleep", "s_setprio", "s_endpgm")): self.rd = U(o)
            else: self.wr = o[0] if o else set(); self.rd = U(o[1:])
            if "saveexec" in op: self.wr |= {("exec", 0)}

def isv(rs): return {r for r in rs if r[0] in "va" and r[0] != "vcc"}
def iss(rs): return {r for r in rs if r[0] == "s" or r[0] == "vcc"}

def need(p, c):
    n = 0
    if p.cls == "valu":
        pv, ps = isv(p.wr), iss(p.wr)
        if c.cls == "mfma" and pv & c.rd: n = max(n, 2)
        if c.cls == "valu":
            if (c.perm or c.dpp) and pv & c.rd: n = max(n, 2)
            if c.lane and pv & c.rd: n = max(n, 1)
            if p.trans and pv & c.rd: n = max(n, 1)
            if ("op_sel" in p.mods and not p.op.startswith("v_pk") or "_sdwa" in p.op) and pv & (c.rd | c.wr): n = max(n, 1)
            if ps & c.rd: n = max(n, 4 if c.lane else 2)
            if ("vcc", 0) in ps and c.op.startswith(("v_cndmask", "v_addc", "v_subb")): n = max(n, 2)
        if c.cls == "vm" and ps & c.rd: n = max(n, 5)
        if ("exec", 0) in p.wr and (c.cls == "mfma" or c.perm or c.lane): n = max(n, 4)
        if ("exec", 0) in p.wr and c.dpp: n = max(n, 5)
    if p.cls == "mfma":
        big = {4: 8, 8: 12}[p.passes]
        if c.cls in ("valu", "ds", "vm") and p.wr & (c.rd | c.wr): n = max(n, big)
        if c.cls == "mfma":
            if p.wr & c.ab: n = max(n, big)
            if p.wr & c.srcc:
                same = p.wr == c.srcc and p.op == c.op
                if not same: n = max(n, big - 2)
            elif p.wr & c.wr: n = max(n, big - 2)
        if c.cls == "valu" and p.srcc & c.wr: n = max(n, {4: 3, 8: 7}[p.passes])
    if p.cls == "vm" and p.wide_store & c.wr: n = max(n, 2 if c.cls == "valu" else 1)
    if p.cls == "salu" and ("m0", 0) in p.wr and ("m0", 0) in c.rd and c.cls == "vm": n = max(n, 1)
    return n

class Asm:
    def __init__(self, verbose=False):
        self.lines = []; self.hist = []; self.vmq = []; self.lgq = []; self.nops = 0; self.verbose = verbose
        self.uid = 0
    def label(self, name): self.lines.append(name + ":")
    def newlabel(self, p="L"):
        self.uid += 1; return "%s_%d" % (p, self.uid)
    def raw(self, t): self.lines.append(t)
    def comment(self, t): self.lines.append("    ; " + t)
    def _push(self, ins):
        self.lines.append(ins); self.hist.append(ins); self.hist = self.hist[-32:]
    def forget(self):
        self.hist = []; self.vmq = []; self.lgq = []
    def wait(self, vm=None, lg=None):
        t = []
        if vm is not None: t.append("vmcnt(%d)" % vm); self.vmq = self.vmq[len(self.vmq) - vm:] if vm < len(self.vmq) and vm > 0 else ([] if vm == 0 else self.vmq)
        if lg is not None: t.append("lgkmcnt(%d)" % lg); self.lgq = self.lgq[len(self.lgq) - lg:] if lg < len(self.lgq) and lg > 0 else ([] if lg == 0 else self.lgq)
        self._push(Ins("s_waitcnt " + " ".join(t)))
    def wait_tag(self, tag):
        for q, name in ((self.vmq, "vm"), (self.lgq, "lg")):
            idx = [i for i, e in enumerate(q) if e[1] == tag]
            if idx:
                n = len(q) - 1 - idx[-1]
                if name == "lg" and any(e[2] for e in q): n = 0
                self.wait(**{name: n})
    def __call__(self, text, tag=None):
        for line in text.split("\n"):
            line = line.strip()
            if line: self.emit(line, tag)
    def prewait(self, *texts):
        touched = set()
        for t in texts:
            c = Ins(t); touched |= c.rd | c.wr
        self._autowait(touched)
    def _autowait(self, touched):
        w = {}
        for q, name in ((self.vmq, "vm"), (self.lgq, "lg")):
            idx = [i for i, e in enumerate(q) if e[0] & touched]
            if idx:
                n = len(q) - 1 - idx[-1]
                if name == "lg" and q[idx[-1]][2]: n = 0
                w[name] = min(n, 63 if name == "vm" else 15)
        if w: self.wait(**w)
    def emit(self, text, tag=None):
        c = Ins(text)
        assert c.op != "s_waitcnt", "use wait()"
        self._autowait(c.rd | c.wr)
        def missing():
            dist = 0; req = 0; who = None
            for i in range(len(self.hist) - 1, -1, -1):
                p = self.hist[i]
                m = need(p, c) - dist
                if m > req: req, who = m, i
                dist += p.states
                if dist > 20: break
            return req, who
        req, who = missing()
        while req > 0:
            placed = False
            idx = [i for i in range(who, len(self.hist)) if self.hist[i].cls == "mfma"]
            for i0, i1 in zip(idx, idx[1:]):
                gap = self.hist[i0 + 1:i1]
                used = sum(x.states + (x.cls in ('ds', 'vm')) for x in gap)
                free = self.hist[i0].passes - 1 - used
                fv = [k for k, x in enumerate(gap) if x.cls == "valu"]
                if fv: free = max(free, (2 if self.hist[i0].sparse else 1) - sum(x.states + (x.cls in ('ds', 'vm')) for x in gap[:fv[0]]))
                if free > 0:
                    n = min(free, req); nop = Ins("s_nop %d" % (n - 1))
                    li = len(self.lines) - 1 - self.lines[::-1].index(self.hist[i0])
                    self.lines.insert(li + 1, nop); self.hist.insert(i0 + 1, nop); placed = True
                    break
            if not placed: break
            req, who = missing()
        if req > 0:
            self.nops += req
            if self.verbose: print("nop %d before: %s" % (req, text))
            self._push(Ins("s_nop %d" % (req - 1)))
        self._push(c)
        if c.cls == "vm": self.vmq.append((set(c.wr), tag, False))
        if c.cls == "ds": self.lgq.append((set(c.wr), tag, False))
        if c.cls == "smem" and tag != "stamp": self.lgq.append((set(c.wr), tag, True))
    def text(self): return "\n".join(x if isinstance(x, str) else "    " + x.text for x in self.lines) + "\n"
```

```python
from gen import *

X = 131072
KV_OFF, KVM_OFF, IN1_OFF = 0, 33 << 20, (50 << 20) + X
MEM_OFF = IN1_OFF + (512 << 10)
NOT_OFF = MEM_OFF + (32 << 10)
MEMB, QT, PX, OX, SEL, MXB = 0, 8192, 12800, 14336, 20480, 21504
QS = 1088
CSC = 0.12751743032665168
NSEG = 64

vIDX, vL16, vWL, vVX, vKW, vTR, vOR, vS1, vPUB, vKX, vTOUCH, vJ0, vOW = range(0, 13)
vJ1 = 15
vSEN, vLa, vLb = 13, 14, 15
A0 = 16
QA, KA, VA = 48, 56, 64
KX, VX = 72, 80
T = 88
LAND = [KX, VX, T, T + 8, T + 16, T + 24, T + 32]
sWS, sW2 = 8, 12
sH, sSTEP, sKV, sKVM, sST1, sST1b, sLD1, sRS1, sPUB, sRS2, sLD2, sSPIN, sGIVE, sT0, sT1, sC = range(16, 32)
sC2 = 32
sLO, sHI = 34, 35
sONE, sHLF, sTAG, sSPN2, sMSK, sKVb, sKVt = 42, 44, 46, 47, 48, 50, 51
sKM, sKF = 52, 54
KVF = 56 << 20

def frag_places(w):
    lds = [("q", 0, 0), ("q", 1, 0), ("q", 0, 1), ("q", 1, 1), ("q", 0, 2), ("q", 1, 2),
           ("k", 0, 0), ("k", 1, 0), ("k", 0, 1), ("k", 1, 1), ("k", 0, 2), ("k", 1, 2),
           ("o", 2, 3), ("o", 3, 1), ("o", 3, 2), ("o", 3, 3)]
    units = []
    for m in "qkv":
        for kk in range(8):
            if (m, 0, kk) not in lds: units.append([(m, 0, kk), (m, 1, kk)])
    of = [("o", i, sl) for i in range(4) for sl in range(4) if ("o", i, sl) not in lds]
    units += [of[i:i + 2] for i in range(0, len(of), 2)]
    place = {}; r = 128
    for un in units:
        for f in un: place[f] = r; r += 8
    assert r == 512
    for n, f in enumerate(lds): place[f] = ("lds", n)
    units += [lds[i:i + 2] for i in range(0, 16, 2)]
    return place, units

def prologue(A, w, cfg):
    place, units = frag_places(w)
    L, G, C, t0, t1, t2, vPS, vOS, vP0, vP1, vO = 100, 101, 102, 103, 104, 105, 106, 107, 108, 109, 110
    A(f"v_and_b32 {v(L)}, 63, v0")
    A(f"v_lshrrev_b32 {v(G)}, 4, {v(L)}"); A(f"v_and_b32 {v(C)}, 15, {v(L)}")
    def bits(dst, terms, const=0):
        A(f"v_mov_b32 {v(dst)}, {const}")
        for (b, n, sh) in terms:
            A(f"v_bfe_u32 {v(t0)}, {v(L)}, {b}, {n}"); A(f"v_lshl_add_u32 {v(dst)}, {v(t0)}, {sh}, {v(dst)}")
    bits(vPS, [(2, 1, 13), (3, 1, 15), (4, 1, 14), (5, 1, 16), (0, 1, 5)])
    A(f"v_lshrrev_b32 {v(t0)}, 1, {v(L)}"); A(f"v_lshrrev_b32 {v(t1)}, 5, {v(L)}"); A(f"v_xor_b32 {v(t0)}, {v(t0)}, {v(t1)}")
    A(f"v_and_b32 {v(t0)}, 1, {v(t0)}"); A(f"v_lshl_add_u32 {v(vPS)}, {v(t0)}, 4, {v(vPS)}")
    bits(vOS, [(2, 1, 10), (3, 1, 13), (4, 1, 11), (5, 1, 12), (0, 2, 4)])
    srd = {"q": 16, "k": 24, "v": 32, "o": 40}
    A(f"s_load_dwordx4 s[40:43], s[0:1], 16"); A(f"s_load_dwordx4 s[44:47], s[0:1], 32"); A(f"s_load_dwordx2 s[48:49], s[0:1], 8")
    A.wait(lg=0)
    base = {"q": 52, "k": 56, "v": 60, "o": 64}
    for i, m in enumerate("qkvo"):
        b = base[m]
        A(f"s_mov_b32 s{b}, s{40+2*i}"); A(f"s_mov_b32 s{b+1}, s{41+2*i}"); A(f"s_mov_b32 s{b+2}, 0x400000"); A(f"s_mov_b32 s{b+3}, 0x20000")
    A(f"s_lshl_b32 s50, s{sH}, 8"); A(f"s_add_u32 s50, s50, {w*64}")
    A(f"s_lshl_b32 s51, s{sH}, 17"); A(f"s_add_u32 s51, s51, {w*64}")
    def dma(un):
        slot = un % 8; fr = units[un]
        for n in range(4):
            if fr[0][0] != "o":
                m, _, kk = fr[0]; so = (kk * 64 + n * 16) * 8192; sb = 50; vs = vPS
            else:
                m, i, sl = fr[n >> 1]; so = (32 * ((w + sl) & 3) + 16 * (n & 1)) * 1024 + 256 * i; sb = 51; vs = vOS
            A(f"s_mov_b32 m0, {w*32768 + slot*4096 + n*1024}"); A(f"s_add_u32 s{sT0}, s{sb}, {so}")
            A(f"buffer_load_dwordx4 {v(vs)}, {s(base[m],4)}, s{sT0} offen lds {cfg.get('wfl','')}", tag=("u", un))
    bits(vL16, [(0, 6, 4)], X)
    bits(vPUB, [(4, 2, 4), (0, 2, 2), (2, 2, 30)])
    A(f"v_bfe_u32 {v(t0)}, {v(L)}, 3, 1"); A(f"v_lshlrev_b32 {v(t0)}, 30, {v(t0)}"); A(f"v_and_b32 {v(vPUB)}, 0x7fffffff, {v(vPUB)}"); A(f"v_or_b32 {v(vPUB)}, {v(t0)}, {v(vPUB)}")
    bits(t2, [(4, 2, 10), (0, 2, 2)], 256 * w)
    A(f"s_and_b32 s{sT0}, s{sH}, 1"); A(f"s_lshl_b32 s{sT0}, s{sT0}, 12"); A(f"s_lshr_b32 s{sT1}, s{sH}, 1"); A(f"s_lshl_b32 s{sT1}, s{sT1}, 4")
    A(f"s_add_u32 s{sT0}, s{sT0}, s{sT1}"); A(f"v_add_u32 {v(t2)}, s{sT0}, {v(t2)}")
    A(f"global_load_dword {v(t1)}, {v(t2)}, s[48:49]")
    for r in range(4): A(f"v_mov_b32 {v(112+r)}, -1")
    A(f"s_lshl_b32 s{sLD1}, s{sH}, 13"); A(f"s_add_u32 s{sLD1}, s{sLD1}, {IN1_OFF + w*2048 - X}")
    A(f"s_xor_b32 s{sRS1}, s{sLD1}, {256<<10}")
    for sr in (sLD1, sRS1):
        for n in range(2): A(f"buffer_store_dwordx4 {v(112,4)}, {v(vL16)}, {s(sWS,4)}, s{sr} offen offset:{n*1024} sc1")
    A(f"s_lshl_b32 s{sPUB}, s{sH}, 6"); A(f"s_add_u32 s{sPUB}, s{sPUB}, {MEM_OFF + w*2048}")
    for sl in (1, 2, 3):
        A(f"s_add_u32 s{sT0}, s{sPUB}, {sl*8192}"); A(f"buffer_store_dword {v(112)}, {v(vPUB)}, {s(sWS,4)}, s{sT0} offen sc1")
    A(f"buffer_store_dword {v(t1)}, {v(vPUB)}, {s(sWS,4)}, s{sPUB} offen sc1")
    for un in range(8): dma(un)
    bits(vP0, [(2, 1, 6), (4, 1, 7), (3, 1, 9), (5, 1, 10), (3, 1, 5), (0, 2, 3)], w * 32768)
    A(f"v_xor_b32 {v(vP1)}, 32, {v(vP0)}")
    bits(vO, [(2, 1, 6), (4, 1, 7), (5, 1, 9), (3, 1, 5), (0, 2, 3)], w * 32768)
    bits(vWL, [(0, 6, 4)], w * 32768)
    bits(vKW, [(0, 4, 4), (4, 1, 3), (5, 1, 2)], X + QT + w * QS)
    bits(vTR, [(4, 2, 6), (2, 2, 4), (0, 1, 3), (1, 1, 11), (1, 1, 7)], X + QT)
    bits(vOR, [(4, 2, 7), (4, 2, 8), (0, 3, 4)], X)
    bits(vOW, [(4, 2, 7), (4, 2, 8), (0, 4, 4)], X + OX + w * 1536)
    bits(vS1, [(5, 1, 15), (3, 1, 14), (4, 1, 13), (0, 3, 3)], X)
    bits(vVX, [(4, 2, 9), (3, 1, 8), (0, 3, 4)], w * 4096 + 2048)
    bits(vKX, [(4, 2, 9), (3, 1, 13), (0, 3, 4)], w * 128)
    bits(vTOUCH, [(0, 5, 7)])
    bits(t2, [(0, 2, 2), (2, 2, 0)])
    A(f"v_and_b32 {v(t1)}, 1, {v(t2)}"); A(f"v_lshlrev_b32 {v(t1)}, 4, {v(t1)}"); A(f"v_mov_b32 {v(t0)}, 0x3f80"); A(f"v_lshlrev_b32 {v(t1)}, {v(t1)}, {v(t0)}")
    A(f"v_lshrrev_b32 {v(t2)}, 1, {v(t2)}")
    for r in range(4):
        A(f"v_cmp_eq_u32 vcc, {r}, {v(t2)}"); A(f"v_cndmask_b32 {v(112+r)}, 0, {v(t1)}, vcc")
    A(f"ds_write_b128 {v(vL16)}, {v(112,4)} offset:{SEL}")
    A(f"v_bfe_u32 {v(t0)}, {v(L)}, 3, 1"); A(f"v_mul_u32_u24 {v(t0)}, 0xaaaa, {v(t0)}"); A(f"v_add_u32 {v(vIDX)}, 0x4444, {v(t0)}")
    for un in range(32):
        slot = un % 8; fr = units[un]
        A.wait_tag(("u", un))
        if un == 0: cfg["arrive"](A, w)
        for fi, f in enumerate(fr):
            dst = place[f] if un < 24 else A0 + 8 * fi
            for p in range(4):
                if f[0] != "o": A(f"ds_read_b64_tr_b16 {u(dst+2*p,2)}, {v(vP1 if f[1] else vP0)} offset:{slot*4096 + (p&1)*256 + (p>>1)*2048}")
                else: A(f"ds_read_b64_tr_b16 {u(dst+2*p,2)}, {v(vO)} offset:{slot*4096 + fi*2048 + (p&1)*256 + (p>>1)*1024}")
        A.wait(lg=0)
        if un < 24: dma(un + 8)
        else:
            for q in range(4): A(f"ds_write_b128 {v(vWL)}, {v(A0+4*q,4)} offset:{slot*4096 + q*1024}")
    A(f"s_lshl_b32 s{sKV}, s{sH}, 14"); A(f"s_add_u32 s{sKV}, s{sKV}, {KV_OFF}")
    A(f"s_lshl_b32 s{sKVM}, s{sH}, 12"); A(f"s_add_u32 s{sKVM}, s{sKVM}, {KVM_OFF + w*1024 - X}")
    A(f"s_lshl_b32 s{sST1}, s{sH}, 6"); A(f"s_add_u32 s{sST1}, s{sST1}, {IN1_OFF - X + w*65536}")
    A(f"s_mov_b32 s{sSTEP}, 0"); A(f"s_mov_b32 s{sGIVE}, 0"); A(f"s_mov_b32 s{sSPN2}, 0")
    import struct
    cb = struct.unpack("<I", struct.pack("<f", CSC))[0]
    A(f"s_mov_b32 s{sC2}, {cb:#x}"); A(f"s_mov_b32 s{sC2+1}, {cb:#x}")
    for r in range(2): A(f"s_mov_b32 s{sONE+r}, 0x3f803f80"); A(f"s_mov_b32 s{sHLF+r}, 0x3f003f00"); A(f"s_mov_b32 s{sMSK+r}, 0x00ff00ff")
    A(f"s_mov_b32 s{sLO}, {(127-60)<<23:#x}"); A(f"s_mov_b32 s{sHI}, {120<<23:#x}")
    A.wait(lg=0)

def loop(A, w, cfg, sc):
    place, _ = frag_places(w)
    stamp = cfg.get("stamp")
    def ST(n):
        if stamp and n in stamp: k = stamp.index(n); A(f"s_memtime s[{70+2*k}:{71+2*k}]", tag="stamp")
    lab = lambda n: f"T{n}_{w}{sc}"
    def wread(f, reg):
        n = place[f][1]
        return [f"ds_read_b128 {v(reg+4*hh,4)}, {v(vWL)} offset:{n*2048 + hh*1024}" for hh in range(2)]
    L0, L1, L2, L3 = T, T + 8, T + 16, T + 24
    ONE, VB = T + 32, T + 36
    land = {("q",0,0): A0 + 24, ("q",1,0): VA, ("q",0,1): L0, ("q",1,1): L1, ("q",0,2): L2, ("q",1,2): L3,
            ("k",0,0): L0, ("k",0,1): L1, ("k",0,2): L2, ("k",1,0): L3, ("k",1,1): L0, ("k",1,2): L1,
            ("o",2,3): QA, ("o",3,1): KA, ("o",3,2): L3, ("o",3,3): L0}
    W = lambda f: u(land[f] if f in land else place[f], 8)
    wr = lambda f: wread(f, land[f])
    acc = {"q": QA, "k": KA, "v": VA}
    def sm(m, t, kk): return f"v_smfmac_f32_16x16x64_bf16 {v(acc[m]+4*t,4)}, {v(A0+4*kk,4)}, {W((m,t,kk))}, {v(vIDX)}"
    def put(y):
        if callable(y): y()
        elif isinstance(y, tuple): A(y[0], tag=y[1])
        else: A(y)
    def weave(mf, fill, nm="-", nxt=None):
        for i, x in enumerate(mf):
            A(x); ST(f"{nm}{i}")
            f = fill.get(i, []); nx = mf[i + 1] if i + 1 < len(mf) else nxt
            for k, y in enumerate(f):
                if k == len(f) - 1 and isinstance(y, str) and y.startswith("v_") and nx: A.prewait(nx, y)
                put(y)
    pw = lambda *x: (lambda: A.prewait(*x))
    def bar(tag):
        def f(): A.wait_tag(tag); A("s_barrier")
        return f
    zero = lambda r: f"v_mov_b64 {v(r,2)}, 0"
    ror = "row_ror:8 row_mask:0xf bank_mask:0xf"
    ad = lambda d, x, y: f"v_add_f32 {v(d)}, {v(x)}, {v(y)}"
    pk = lambda d, x, y: f"v_pk_add_f32 {v(d,2)}, {v(x,2)}, {v(y,2)}"
    sw = lambda x, y: f"v_permlane32_swap_b32 {v(x)}, {v(y)}"
    cv = lambda d, x: f"v_cvt_pk_bf16_f32 {v(d)}, {v(x)}, {v(x+1)}"
    trr = lambda dst, m, t, off: f"ds_read_b64_tr_b16 {v(dst,2)}, {v(vTR)} offset:{off + m*QS + t*256}"
    win = sum([wr(f) for f in [("q",0,0),("q",0,1),("q",1,1),("q",0,2),("q",1,2),("q",1,0)]], [])
    winz = [zero(QA + 2 * k) for k in range(8)]
    wint = [f"v_bfe_u32 {v(vTOUCH)}, {v(vL16)}, 4, 5", f"v_lshlrev_b32 {v(vTOUCH)}, 7, {v(vTOUCH)}"]
    pack = [trr(VB, w >> 1, w & 1, 512)] + [sw(VA + r, VA + 4 + r) for r in range(4)] + [pk(VA, VA, VA + 4), pk(VA + 2, VA + 2, VA + 6), cv(VB + 2, VA), cv(VB + 3, VA + 2)]
    KVS = 0 if cfg.get("nokv") else 128 * 4096
    kxl = [f"buffer_load_dwordx4 {v(KX+4*n,4)}, {v(vKX)}, {s(sWS,4)}, s{sKVb if n else sKV} offen sc1" for n in range(2)]
    vxl = [f"buffer_load_dwordx4 {v(VX+4*n,4)}, {v(vVX)}, {s(sWS,4)}, s{sKV} offen offset:{n*128} sc1" for n in range(2)]
    pub = lastpub = f"buffer_store_dwordx4 {v(VB,4)}, {v(vL16)}, {s(sWS,4)}, s{sKVM} offen sc1"
    if cfg.get("nopub"): pub = "s_nop 0"
    QF, KF, SXA, SMA, BX, BM, HLF, OA, LA = L2, L3, QA, QA + 4, KA, KA + 4, KA + 6, L1, L0
    def cnt(r):
        if cfg.get("meas", True): A(f"s_add_u32 s{r}, s{r}, 1")
    def delay(n):
        while n > 0: A(f"s_nop {min(n,16)-1}"); n -= 16
    spinmax = cfg.get("spin", 100000)
    A(f"s_add_u32 s{sKVb}, s{sKV}, 4096"); A(f"s_add_u32 s{sKVt}, s{sKV}, {KVS + w*4096}")
    for x in win + winz: A(x)
    A(f"s_mov_b32 s{sSPIN}, 0"); A(f"s_mov_b32 s{sTAG}, 0"); A(f"v_mov_b32 {v(vSEN)}, -1")
    A(f"v_mov_b64 {v(ONE,2)}, {s(sONE,2)}"); A(f"v_mov_b64 {v(ONE+2,2)}, {s(sONE,2)}")
    A(f"s_mov_b32 s{sLD2}, {MEM_OFF + w*2048 - X}"); A(f"s_mov_b32 m0, {X + MEMB + w*2048}")
    SL, RA = A0, A0 + 4
    sal = [f"s_add_u32 s{sSTEP}, s{sSTEP}, 1", f"s_and_b32 s{sT0}, s{sSTEP}, 3", f"s_lshl_b32 s{sT0}, s{sT0}, 13", f"s_add_u32 s{sT1}, s{sPUB}, s{sT0}",
           f"s_add_u32 s{sLD2}, s{sT0}, {MEM_OFF + w*2048 - X}", f"s_xor_b32 s{sST1}, s{sST1}, {256<<10}", f"s_xor_b32 s{sRS2}, s{sT1}, 16384"]
    tail = [f"ds_read_b128 {v(SL,4)}, {v(vL16)} offset:{SEL}"] + sal
    oth = list(win)
    for x in pack + winz: tail += [x] + oth[:1]; oth = oth[1:]
    ta, tb, tc = cfg.get("tp", [(0, 26, 0)] * 4)[w]
    assert ta + tb >= 8 and ta + tb + tc >= 26
    def need_kv(nm):
        if cfg.get("alone"): return
        A(f"s_bitcmp1_b64 {s(sKM,2)}, s{sT0}"); A(f"s_cbranch_scc0 {lab(nm)}"); A.label(lab(nm + "d"))
    A(f"s_lshl_b32 s{sKF}, s{sH}, 8"); A(f"s_add_u32 s{sKF}, s{sKF}, {KVF - (X >> 2)}"); A(f"s_mov_b64 {s(sKM,2)}, 0")
    A(f"s_mov_b32 s{sT0}, 0"); need_kv("kv0"); A(f"s_mov_b32 s{sT0}, 1"); need_kv("kv1")
    A.wait(vm=0, lg=0)
    A.label(lab("step"))
    ST(0)
    H2 = VX
    g2 = cfg.get("g2", [[]] * 4)[w]; D2 = len(g2) + 1
    def iss2():
        A.vmq = []
        for n in range(2): A(f"buffer_load_dwordx4 {v(H2+4*n,4)}, {v(vL16)}, {s(sWS,4)}, s{sLD2} offen offset:{n*1024} sc1")
        A.vmq = []
    def use2():
        H = H2
        wrt = [f"ds_write_b128 {v(vL16)}, {v(H+4*n,4)} offset:{MEMB + (2*w+n)*1024}" for n in range(2)]
        A.wait(vm=2 * D2 - 1)
        A(f"v_max3_u32 {v(vJ0)}, {v(H)}, {v(H+1)}, {v(H+2)}"); A(f"v_max_u32 {v(vJ0)}, {v(vJ0)}, {v(H+3)}")
        if cfg.get("spec2", True): A(wrt[0])
        A.wait(vm=2 * D2 - 2)
        A(f"v_max3_u32 {v(vJ0)}, {v(vJ0)}, {v(H+4)}, {v(H+5)}"); A(f"v_max3_u32 {v(vJ0)}, {v(vJ0)}, {v(H+6)}, {v(H+7)}")
        A(f"v_cmp_eq_u32 vcc, -1, {v(vJ0)}")
        if cfg.get("spec2", True): A(wrt[1])
        return wrt
    rest = tail[ta + tb + tc:] + wint
    iss2()
    for k, g in enumerate(g2): delay(g); iss2()
    for x in rest: A(x)
    wrt = use2(); A(f"s_cbranch_vccnz {lab('r2')}"); A.label(lab("ok2")); ST(1)
    if not cfg.get("spec2", True):
        for x in wrt: A(x)
    A.wait(lg=0); A("s_barrier"); ST(2)
    ar = lambda kk: f"ds_read_b128 {v(A0+4*kk,4)}, {v(vL16)} offset:{MEMB + kk*1024}"
    A(ar(0)); A(ar(1)); A(ar(2))
    def preadd(base, t, ldsoff, tag=None):
        r = base + 4 * t
        return [sw(r, r + 2), sw(r + 1, r + 3), ad(r, r, r + 2), ad(r + 1, r + 1, r + 3), cv(r, r),
                (f"ds_write_b32 {v(vKW)}, {v(r)} offset:{ldsoff + t*256}", tag)]
    q0, q1, k0, k1 = preadd(QA, 0, 0), preadd(QA, 1, 0, "q"), preadd(KA, 0, 512), preadd(KA, 1, 512, "k")
    qr = [trr(QF + 4 * m + 2 * t, m, t, 0) for m in range(2) for t in range(2)]
    kr = [trr(KF + 4 * m + 2 * t, m, t, 512) for m in range(2) for t in range(2)]
    sx = [f"v_mfma_f32_16x16x32_bf16 {v(SXA,4)}, {v(KX+4*m,4)}, {v(QF+4*m,4)}, {v(SXA,4) if m else 0}" for m in range(2)]
    ss = [f"v_mfma_f32_16x16x32_bf16 {v(SMA,4)}, {v(KF+4*m,4)}, {v(QF+4*m,4)}, {v(SMA,4) if m else 0}" for m in range(2)]
    vs = [sm("v", t, kk) for t in range(2) for kk in range(8)]
    touch = f"buffer_load_dword {v(vTOUCH)}, {v(vTOUCH)}, {s(sWS,4)}, s{sKVt} offen sc1"
    mf = [sm("q", t, kk) for kk in range(3) for t in range(2)] + [sm("q", t, kk) for t in range(2) for kk in range(3, 8)]
    mf += [sm("k", 0, kk) for kk in (3, 4, 0, 1, 2, 5, 6, 7)] + [sm("k", 1, kk) for kk in (3, 4, 5, 0, 6, 7, 1, 2)] + sx
    slot = {}
    def at(i, x):
        while i in slot: i += 1
        slot[i] = x; return i
    for i in range(5): at(i, [ar(3 + i)])
    at(17, [q0[5]]); at(22, [q1[5]]); at(26, [bar("q"), qr[0]]); at(27, [qr[1]]); at(28, [qr[2]]); at(29, [qr[3]]); at(31, [k0[5]]); at(15, []); at(30, [pw(kxl[1])])
    vp = cfg.get("vp", [[-1, 5, 9, 13, 24, 25], [-1, 6, 10, 14, 25, 24], [-1, 7, 11, 16, 23, 25], [-1, 8, 12, 18, 25, 23]])[w]
    for x, e in zip(kxl + vxl + [touch, pub], vp):
        if e < 0: A(x)
        else: assert at(e, [x]) == e
    for f, e in ((("k",0,0), 5), (("k",0,1), 5), (("k",0,2), 5), (("k",1,0), 6), (("k",1,1), 19), (("k",1,2), 20)):
        for x in wr(f): at(e, [x])
    fill = {i: list(x) for i, x in slot.items()}
    def va(i, *x): fill[i] = fill.get(i, []) + list(x)
    va(1, pw(mf[2], mf[4]))
    for i in range(4): va(8 + i, zero(VA + 2 * i))
    for i in range(5): va(12 + i, q0[i]); va(17 + i, q1[i])
    for i, e in enumerate((25, 27, 28, 29, 30)): va(e, k0[i])
    if cfg.get("show"): print(w, {i: len(x) for i, x in sorted(fill.items())})
    assert max(fill) < len(mf)
    weave(mf, fill, "q")
    for x in k1[:5]: A(x)
    ST(3)
    def quad(r):
        return [sw(r, r + 2), sw(r + 1, r + 3), f"v_add_f32_dpp {v(r)}, {v(r+2)}, {v(r)} {ror}", f"v_add_f32_dpp {v(r+1)}, {v(r+3)}, {v(r+1)} {ror}"]
    ex = lambda r: [f"v_exp_f32 {v(r+2)}, {v(r)}", f"v_exp_f32 {v(r+3)}, {v(r+1)}"]
    xq, mq = quad(SXA), quad(SMA)
    xe = ex(SXA) + [cv(SXA + 2, SXA + 2), (f"ds_write_b32 {v(vKW)}, {v(SXA+2)} offset:{PX - QT - w*QS + w*384}", "p")]
    me = ex(SMA) + [cv(BM, SMA + 2), cv(BM + 1, SMA + 2), sw(BM, BM + 1)]
    ms = [f"v_mul_f32 {v(SMA+r)}, s{sC2}, {v(SMA+r)}" for r in range(2)]
    vc = [cv(VB + n, VA + 2 * n) for n in range(4)]
    bxr = f"ds_read_b128 {v(BX,4)}, {v(vOR)} offset:{PX}"
    mx = [f"v_mfma_f32_16x16x32_bf16 {v(d,4)}, {v(x,4)}, {v(BX,4)}, 0" for d, x in ((LA, ONE), (OA, VX), (OA + 4, VX + 4))]
    mm = [f"v_mfma_f32_16x16x16_bf16 {v(d,4)}, {v(x,2)}, {v(BM,2)}, {v(d,4)}" for d, x in ((LA, HLF), (OA, VB), (OA + 4, VB + 2))]
    z = [zero(A0 + 2 * n) for n in range(8)]
    mf = vs[0:9] + ss + vs[9:16]
    fill = {0: [k1[5], xq[0]], 1: [f"s_add_u32 s{sKV}, s{sKV}, {KVS}", f"s_add_u32 s{sKVb}, s{sKV}, 4096", xq[1]],
            2: [f"s_add_u32 s{sKVM}, s{sKVM}, {128*1024}", f"s_add_u32 s{sKVt}, s{sKVt}, {KVS}", xq[2]], 3: [f"s_add_u32 s{sST1b}, s{sST1}, 4096", xq[3]],
            4: [bar("k"), kr[0], kr[1]], 5: [kr[2], kr[3]],
            6: [xe[0]], 7: [xe[1]], 8: [xe[2]], 9: [xe[3]], 10: [vc[0], vc[1]], 11: [f"v_mov_b64 {v(HLF,2)}, {s(sHLF,2)}"],
            12: [mq[0]], 13: [bar("p"), mq[1]], 14: [bxr, mq[2]], 15: [mq[3]], 16: [ms[0]], 17: [ms[1]]}
    fill2 = {0: [me[1]], 1: [me[2], me[3]], 2: [f"s_cmp_eq_u32 s{sSTEP}, {NSEG-1}", me[4]], 3: [vc[2], vc[3]], 4: [z[0], z[1]], 5: []}
    weave(mf, fill, "v")
    A.label(lab("sm"))
    A(me[0]); A.prewait(mx[0], mx[2])
    weave(mx + mm, fill2, "pv")
    A(f"v_rcp_f32 {v(vLa)}, {v(LA)}")
    A(f"v_subrev_u32 {v(vJ0)}, s{sLO}, {v(LA)}"); A(f"v_cmp_lt_u32 vcc, s{sHI}, {v(vJ0)}")
    OF = A0 + 16
    pm = lambda r: f"v_pk_mul_f32 {v(r,2)}, {v(r,2)}, {v(vLa,2)} op_sel_hi:[1,0]"
    A(pm(OA)); A(pm(OA + 2)); A(cv(OF, OA)); A(cv(OF + 1, OA + 2))
    A(pm(OA + 4)); A(pm(OA + 6)); A(f"ds_write_b64 {v(vOW)}, {v(OF,2)}"); A(cv(OF + 2, OA + 4)); A(cv(OF + 3, OA + 6)); A(f"ds_write_b64 {v(vOW)}, {v(OF+2,2)} offset:8")
    ST("ow")
    wo = lambda i, sl: f"v_smfmac_f32_16x16x64_bf16 {v(A0+4*i,4)}, {v(OF+4*sl,4)}, {W(('o',i,sl))}, {v(vIDX)}"
    orr = [f"ds_read_b128 {v(OF+4*sl,4)}, {v(vOR)} offset:{OX + ((w+sl)&3)*1536}" for sl in range(4)]
    ow = sum([wr(f) for f in [("o",2,3),("o",3,1),("o",3,2),("o",3,3)]], [])
    H1, SL, RA = [KX, VX], A0, A0 + 4
    A(f"s_cbranch_scc1 {lab('end')}")
    for r in range(4): A(f"v_mov_b32_dpp {v(OF+r)}, {v(OF+r)} row_ror:8 row_mask:0xf bank_mask:0xc")
    A(f"s_and_b64 vcc, vcc, {s(sMSK,2)}"); A(z[2]); A(f"s_cbranch_scc1 {lab('mx')}")
    A.label(lab("mxd"))
    A(wo(0, 0)); A(z[3])
    A.wait(lg=0); A("s_barrier"); ST("obar")
    A(orr[1])
    mf = [wo(1, 0), wo(2, 0), wo(3, 0)] + [wo(i, sl) for i in range(4) for sl in range(1, 4)]
    def iss1(k):
        for n in range(2): A(f"buffer_load_dwordx4 {v(H1[k]+4*n,4)}, {v(vL16)}, {s(sWS,4)}, s{sLD1} offen offset:{n*1024} sc1")
    def out(i):
        r = A0 + 4 * i
        return [cv(r, r), cv(r + 1, r + 2), f"v_and_or_b32 {v(r)}, {v(r)}, -2, s{sTAG}",
                f"buffer_store_dwordx2 {v(r,2)}, {v(vS1)}, {s(sWS,4)}, s{sST1b if i>>1 else sST1} offen offset:{(i&1)*2048} {sc}"]
    o0, o1, o2, o3 = [out(i) for i in range(4)]
    A(z[4]); A(z[5])
    fill = {0: [orr[2], z[6]], 1: [z[7], orr[3]], 2: [ow[0]], 3: [ow[1]], 4: [ow[2]], 5: [ow[3]], 6: [ow[4]]}
    if cfg.get("burst"):
        fill.update({7: [ow[5]] + o0, 8: [ow[6]], 9: [ow[7]], 10: o1, 13: o2})
    else:
        fill.update({7: [ow[5], o0[0]], 8: [ow[6], o0[1]], 9: [ow[7], o0[2]], 10: [pw(mf[12]), o0[3], o1[0]], 11: [o1[1]], 12: [pw(mf[14]), o1[2]], 13: [o1[3], o2[0]], 14: o2[1:]})
    x1 = cfg.get("x1", [[0]] * 4)[w]; D1 = len(x1)
    if x1[0] < 0: fill[-x1[0]] = fill.get(-x1[0], []) + [lambda: ST("i1"), lambda: iss1(0)]
    weave(mf, fill, "o")
    for x in o3: A(x)
    ST(7)
    for x in tail[:ta]: A(x)
    for k, n in enumerate(x1):
        if n < 0: continue
        delay(n)
        if k == 0: ST("i1")
        iss1(k)
    for x in tail[ta:ta + tb]: A(x)
    if cfg.get("trace"):
        A.wait(lg=0)
        A(f"s_lshl_b32 s{sT0}, s{sSTEP}, 5"); A(f"s_add_u32 s{sT0}, s{sT0}, {X + 22528 + w*2048}"); A(f"v_mov_b32 {v(vJ0)}, s{sT0}")
        for n in range(0, 8, 2):
            A(f"v_mov_b32 {v(vLa)}, s{70+2*n}"); A(f"v_mov_b32 {v(vLb)}, s{72+2*n}"); A(f"ds_write_b64 {v(vJ0)}, {v(vLa,2)} offset:{4*n}")
    A.prewait(f"v_mov_b64 {v(SL,2)}, {v(SL,2)}")
    def use1(k):
        H = H1[k]
        A(f"v_mfma_f32_16x16x32_bf16 {v(RA,4)}, {v(SL,4)}, {v(H,4)}, 0")
        A(f"v_bitop3_b32 {v(vJ0)}, {v(H)}, {v(H+2)}, s{sTAG} bitop3:0x7e")
        A(f"v_mfma_f32_16x16x32_bf16 {v(RA,4)}, {v(SL,4)}, {v(H+4,4)}, {v(RA,4)}")
        A(f"v_bitop3_b32 {v(vLb)}, {v(H+4)}, {v(H+6)}, s{sTAG} bitop3:0x7e")
        A(f"v_bitop3_b32 {v(vJ0)}, {v(vJ0)}, {v(vLb)}, 1 bitop3:0xa8")
        A(f"v_cmp_ne_u32 vcc, 0, {v(vJ0)}")
    use1(0); ST("h1")
    A(f"s_cbranch_vccnz {lab('r1')}"); A.label(lab("ok1")); ST("ok1")
    for rr in (4, 8):
        for r in range(2): A(f"v_add_f32_dpp {v(RA+r)}, {v(RA+r)}, {v(RA+r)} row_ror:{rr} row_mask:0xf bank_mask:0xf")
    A(cv(vLa, RA))
    A(f"buffer_store_dword {v(vLa)}, {v(vPUB)}, {s(sWS,4)}, s{sT1} offen {sc}")
    ST(8)
    A(f"buffer_store_dword {v(vSEN)}, {v(vPUB)}, {s(sWS,4)}, s{sRS2} offen {sc}")
    for x in tail[ta + tb:ta + tb + tc]: A(x)
    A(f"s_xor_b32 s{sLD1}, s{sLD1}, {256<<10}"); A(f"s_bfe_u32 s{sTAG}, s{sSTEP}, 0x10001")
    if stamp and not cfg.get("trace"):
        A.wait(lg=0)
        A(f"s_cmp_lt_u32 s{sSTEP}, 4"); A(f"s_cbranch_scc1 {lab('ns')}")
        for n in range(len(stamp)-1): A(f"s_sub_u32 s{sT0}, s{72+2*n}, s{70+2*n}"); A(f"s_add_u32 s{90+n}, s{90+n}, s{sT0}")
        A(f"s_sub_u32 s{sT0}, s70, s63"); A(f"s_add_u32 s98, s98, s{sT0}")
        A.label(lab("ns")); A("s_mov_b32 s63, s70")
    A(f"s_add_u32 s{sT0}, s{sSTEP}, 1"); need_kv("kv2")
    if cfg.get("meas", True):
        A(f"s_cmp_eq_u32 s{sSTEP}, 8"); A(f"s_cbranch_scc1 {lab('m8')}"); A.label(lab("m8d"))
    delay(cfg.get("d2", [0] * 4)[w])
    A(f"s_branch {lab('step')}")
    if cfg.get("meas", True):
        A.forget(); A.label(lab("m8")); A("s_memtime s[64:65]", tag="stamp"); A("s_memrealtime s[60:61]", tag="stamp"); A("s_mov_b32 s99, 0"); A("s_mov_b32 s101, 0"); A("s_mov_b32 s100, 0"); A(f"s_branch {lab('m8d')}")
    for nm in ([] if cfg.get("alone") else ["kv0", "kv1", "kv2"]):
        A.forget(); A.label(lab(nm))
        A(f"v_lshrrev_b32 {v(vJ0)}, 2, {v(vL16)}"); A(f"buffer_load_dword {v(vJ0)}, {v(vJ0)}, {s(sWS,4)}, s{sKF} offen sc1")
        A(f"v_cmp_eq_u32 {s(sKM,2)}, 1, {v(vJ0)}"); A("s_nop 4")
        A(f"s_bitcmp1_b64 {s(sKM,2)}, s{sT0}"); A(f"s_cbranch_scc1 {lab(nm + 'd')}")
        A(f"s_add_u32 s{sSPIN}, s{sSPIN}, 1"); A(f"s_cmp_lt_u32 s{sSPIN}, {spinmax}"); A(f"s_cbranch_scc1 {lab(nm)}"); A(f"s_branch {lab(nm + 'd')}")
    A.forget(); A.label(lab("r2"))
    for k in range(2):
        iss2(); cnt(99); use2(); A(f"s_cbranch_vccz {lab('ok2')}")
    A(f"s_add_u32 s{sSPIN}, s{sSPIN}, 1"); A(f"s_cmp_lt_u32 s{sSPIN}, {spinmax}"); A(f"s_cbranch_scc1 {lab('r2')}")
    A(f"s_mov_b32 s{sGIVE}, 1"); A(f"s_branch {lab('ok2')}")
    A.forget(); A.label(lab("r1"))
    A.vmq = [({("v", H1[k] + 4 * n + r) for r in range(4)}, None, False) for k in range(1, D1) for n in range(2)]
    for k in range(D1):
        cnt(100); iss1(k); use1((k + 1) % D1); A(f"s_cbranch_vccz {lab('ok1')}")
    A(f"s_add_u32 s{sSPIN}, s{sSPIN}, 1"); A(f"s_cmp_lt_u32 s{sSPIN}, {spinmax}"); A(f"s_cbranch_scc1 {lab('r1')}")
    A(f"s_mov_b32 s{sGIVE}, 1"); A.wait(vm=0); A(f"s_branch {lab('ok1')}")
    A.forget(); A.label(lab("mx"))
    A("s_nop 7")
    A(f"v_max3_f32 {v(vLa)}, {v(SXA)}, {v(SXA+1)}, {v(SMA)}"); A(f"v_max_f32 {v(vLa)}, {v(vLa)}, {v(SMA+1)}"); A(f"v_mov_b32 {v(vLb)}, {v(vLa)}")
    A(f"v_permlane16_swap_b32 {v(vLa)}, {v(vLb)}"); A(f"v_max_f32 {v(vLa)}, {v(vLa)}, {v(vLb)}"); A(f"v_mov_b32 {v(vLb)}, {v(vLa)}")
    A(f"v_permlane32_swap_b32 {v(vLa)}, {v(vLb)}"); A(f"v_max_f32 {v(vLa)}, {v(vLa)}, {v(vLb)}")
    A(f"ds_write_b32 {v(vL16)}, {v(vLa)} offset:{MXB + 4*w}"); A.wait(lg=0); A("s_barrier")
    A(f"ds_read_b128 {v(LA,4)}, {v(vL16)} offset:{MXB}")
    A(f"v_max3_f32 {v(vLa)}, {v(LA)}, {v(LA+1)}, {v(LA+2)}"); A(f"v_max_f32 {v(vLa)}, {v(vLa)}, {v(LA+3)}")
    A(f"v_cmp_neq_f32 vcc, 0, {v(vLa)}")
    A(f"v_mov_b32 {v(vJ0)}, 0x1f8")
    A(f"v_cmp_class_f32 s[36:37], {v(vLa)}, {v(vJ0)}")
    A("s_nop 4"); A("s_and_b64 vcc, vcc, s[36:37]"); A(f"s_and_b64 vcc, vcc, {s(sMSK,2)}")
    A(f"s_cbranch_scc0 {lab('mxd')}")
    A(f"v_cndmask_b32 {v(vLa)}, 0, {v(vLa)}, vcc")
    for r in (SXA, SXA + 1, SMA, SMA + 1): A(f"v_sub_f32 {v(r)}, {v(r)}, {v(vLa)}")
    for x in xe: put(x)
    A.wait(lg=0); A("s_barrier"); A(bxr); A.wait(lg=0)
    A(f"s_cmp_eq_u32 s{sSTEP}, {NSEG-1}")
    A(f"s_branch {lab('sm')}")
    A.forget(); A.label(lab("end"))
    for x in pack + [lastpub]: A(x)

def arrive(A, w):
    A("s_barrier")
    if w == 0:
        A("s_getreg_b32 s36, hwreg(HW_REG_XCC_ID, 0, 3)"); A("s_lshl_b32 s36, s36, 3"); A("s_lshl_b64 s[36:37], 1, s36")
        A("v_mov_b32 v116, s36"); A("v_mov_b32 v117, s37"); A("v_mov_b32 v118, 0")
        A("s_mov_b64 exec, 1"); A("global_atomic_add_x2 v118, v[116:117], s[6:7]"); A("s_mov_b64 exec, -1")

def meet(A, w, cfg):
    A(f"s_mov_b32 s{sSPIN}, 0"); A("v_mov_b32 v118, 0")
    A("s_getreg_b32 s36, hwreg(HW_REG_XCC_ID, 0, 3)"); A("s_lshl_b32 s36, s36, 3"); A("s_lshl_b64 s[36:37], 32, s36")
    if not cfg.get("alone"):
        A.label(f"Tln_{w}")
        A("global_load_dwordx2 v[116:117], v118, s[6:7] offset:128 sc1"); A("v_and_b32 v116, v116, v117"); A("v_cmp_ne_u32 vcc, -1, v116"); A(f"s_cbranch_vccz Tmeet_{w}")
        A(f"s_add_u32 s{sSPIN}, s{sSPIN}, 1"); A(f"s_cmp_lt_u32 s{sSPIN}, {cfg.get('spin', 100000)}"); A(f"s_cbranch_scc1 Tln_{w}")
    A.label(f"Tmeet_{w}")
    A("global_load_dwordx2 v[116:117], v118, s[6:7] sc1")
    A("v_sad_u8 v119, v116, 0, 0"); A("v_sad_u8 v119, v117, 0, v119")
    A("v_readfirstlane_b32 s38, v116"); A("v_readfirstlane_b32 s39, v117"); A("v_readfirstlane_b32 s40, v119")
    A("s_nop 3")
    if not cfg.get("force_slow"):
        A("s_cmp_eq_u64 s[36:37], s[38:39]"); A(f"s_cbranch_scc1 Tfast_{w}")
    A("s_cmp_eq_u32 s40, 32"); A(f"s_cbranch_scc1 Tslow_{w}")
    A(f"s_add_u32 s{sSPIN}, s{sSPIN}, 1"); A(f"s_cmp_lt_u32 s{sSPIN}, {cfg.get('spin', 200000)}"); A(f"s_cbranch_scc1 Tmeet_{w}")

def team(A, cfg, fin):
    cfg = dict(cfg); cfg["arrive"] = arrive
    for w in range(1, 4):
        A(f"s_cmp_eq_u32 s17, {w}"); A(f"s_cbranch_scc1 Twave_{w}")
    for w in range(4):
        A.forget(); A.label(f"Twave_{w}")
        prologue(A, w, cfg); meet(A, w, cfg)
        for sc, nm in (("sc1", "slow"), ("", "fast")):
            A.forget(); A.label(f"T{nm}_{w}")
            if cfg.get("meas", True): A("s_memrealtime s[66:67]", tag="stamp")
            loop(A, w, cfg, sc); fin(A, w)
```

```python
from gen import *
import struct
from team import KV_OFF, KVM_OFF, CSC, X

XN_OFF, Y_OFF, FLG_OFF, PART_OFF = 52 << 20, 54 << 20, 56 << 20, 64 << 20
KVF, MF, AF = FLG_OFF, FLG_OFF + 8192, FLG_OFF + 16384
CHUNK = 48 * 1024; SEGP = 32 * CHUNK
EXC, KVL = 65536, 73728
OOB = 0x40000000
fb = lambda x: "0x%08x" % struct.unpack("<I", struct.pack("<f", x))[0]
LOG2E = 1.4426950408889634

sWS = 8
sU, sWV, sH, sT, sSEG, sSPIN, sA, sB, sC, sM0, sBUF, sPREV, sSRC, sEND, sD, sE = range(16, 32)
sW1, sW2, sXR, sOUT = 32, 36, 40, 44
sLN = 48
vL, vL16, vST, vTRA, vS1, vS2, vKA, vRD, vXO, vZ, vT0, vT1, vT2, vT3, vKM, vVM = range(0, 16)
AC1, AC2, BR, KF, VF, MSK, SMA, KM, G2, MS = 16, 32, 48, 80, 112, 120, 136, 152, 184, 216
SEL, GA, RA, XV, VM, PM, B2 = 216, 220, 224, 228, 232, 236, 230

def bits(A, dst, terms, const=0):
    A(f"v_mov_b32 {v(dst)}, {const}")
    for (b, n, sh) in terms:
        A(f"v_bfe_u32 {v(vT0)}, {v(vL)}, {b}, {n}"); A(f"v_lshl_add_u32 {v(dst)}, {v(vT0)}, {sh}, {v(dst)}")

def srd(A, r, arg, nbytes):
    A(f"s_load_dwordx2 {s(r,2)}, s[0:1], {arg}"); A(f"s_mov_b32 s{r+2}, {nbytes}"); A(f"s_mov_b32 s{r+3}, 0x20000")

def spin(A, again, cfg):
    A(f"s_add_u32 s{sSPIN}, s{sSPIN}, 1"); A(f"s_cmp_lt_u32 s{sSPIN}, {cfg.get('spin', 100000)}"); A(f"s_cbranch_scc1 {again}")

def layer_norm(A, cfg):
    R, F = 16, 64
    bits(A, vT2, [(0, 3, 10), (3, 3, 4)]); bits(A, vT3, [(0, 3, 4), (3, 3, 9)])
    A(f"s_lshl_b32 s{sA}, s{sU}, 15"); A(f"s_lshl_b32 s{sB}, s{sWV}, 13"); A(f"s_add_u32 s{sB}, s{sA}, s{sB}")
    for i in range(8): A(f"buffer_load_dwordx4 {v(R+4*i,4)}, {v(vT2)}, {s(sXR,4)}, s{sB} offen offset:{i*128}")
    A(f"s_lshl_b32 s{sB}, s{sWV}, 7"); A(f"s_add_u32 s{sB}, s{sA}, s{sB}")
    A(f"v_and_b32 {v(vT0)}, 31, {v(vL)}"); A(f"v_lshlrev_b32 {v(vT1)}, 8, {v(vT0)}"); A(f"v_lshlrev_b32 {v(vT0)}, 2, {v(vT0)}")
    A(f"s_lshl_b32 s{sC}, s{sU}, 2"); A(f"s_add_u32 s{sC}, s{sC}, {KVF}"); A(f"buffer_store_dword {v(vZ)}, {v(vT1)}, {s(sWS,4)}, s{sC} offen sc1")
    A(f"s_lshl_b32 s{sC}, s{sU}, 7"); A(f"s_add_u32 s{sC}, s{sC}, {MF}"); A(f"buffer_store_dword {v(vZ)}, {v(vT0)}, {s(sWS,4)}, s{sC} offen sc1")
    A(f"s_add_u32 s{sC}, s{sC}, {AF - MF}"); A(f"buffer_store_dword {v(vZ)}, {v(vT0)}, {s(sWS,4)}, s{sC} offen sc1")
    P, Q = 130, 132
    def allred():
        A(f"v_add_f32 {v(P)}, {v(P)}, {v(P+1)}")
        A(f"v_add_f32_dpp {v(P)}, {v(P)}, {v(P)} row_ror:8 row_mask:0xf bank_mask:0xf")
        for op in ("16", "32"):
            A(f"v_mov_b32 {v(P+1)}, {v(P)}"); A(f"v_permlane{op}_swap_b32 {v(P)}, {v(P+1)}"); A(f"v_add_f32 {v(P)}, {v(P)}, {v(P+1)}")
    for dst in (XN_OFF, Y_OFF):
        for i in range(32):
            A(f"v_lshlrev_b32 {v(F+2*i)}, 16, {v(R+i)}"); A(f"v_and_b32 {v(F+2*i+1)}, 0xffff0000, {v(R+i)}")
        A(f"v_pk_add_f32 {v(P,2)}, {v(F,2)}, {v(F+2,2)}")
        for i in range(2, 32): A(f"v_pk_add_f32 {v(P,2)}, {v(P,2)}, {v(F+2*i,2)}")
        allred(); A(f"v_mul_f32 {v(Q)}, {fb(-1/512)}, {v(P)}")
        for i in range(32): A(f"v_pk_add_f32 {v(F+2*i,2)}, {v(F+2*i,2)}, {v(Q,2)} op_sel_hi:[1,0]")
        A(f"v_pk_mul_f32 {v(P,2)}, {v(F,2)}, {v(F,2)}")
        for i in range(1, 32): A(f"v_pk_fma_f32 {v(P,2)}, {v(F+2*i,2)}, {v(F+2*i,2)}, {v(P,2)}")
        allred(); A(f"v_mov_b32 {v(Q)}, {fb(1e-5)}"); A(f"v_fmac_f32 {v(Q)}, {fb(1/512)}, {v(P)}"); A(f"v_rsq_f32 {v(Q)}, {v(Q)}")
        A(f"s_add_u32 s{sC}, s{sB}, {dst}")
        for i in range(32):
            A(f"v_pk_mul_f32 {v(F+2*i,2)}, {v(F+2*i,2)}, {v(Q,2)} op_sel_hi:[1,0]"); A(f"v_cvt_pk_bf16_f32 {v(R+i)}, {v(F+2*i)}, {v(F+2*i+1)}")
            if i % 4 == 3:
                A(f"buffer_store_dwordx4 {v(R+i-3,4)}, {v(vT3)}, {s(sWS,4)}, s{sC} offen sc1"); A(f"s_add_u32 s{sC}, s{sC}, 4096")
    A.wait(vm=0); A("s_barrier")
    A(f"s_lshl_b64 {s(sD,2)}, 1, s{sU}"); A(f"v_mov_b32 {v(R)}, s{sD}"); A(f"v_mov_b32 {v(R+1)}, s{sE}")
    A(f"s_cmp_lg_u32 s{sWV}, 0"); A("s_cbranch_scc1 Wln_done")
    A("s_mov_b64 exec, 1"); A(f"global_atomic_or_x2 {v(vZ)}, {v(R,2)}, s[6:7] offset:128"); A("s_mov_b64 exec, -1")

def load_weights(A, kinds):
    units = []
    for half, kd in enumerate(kinds):
        for un in range(8): units.append((half, kd, un))
    def dma(i):
        half, kd, un = units[i]
        for n in range(4):
            so = (64 * un + 16 * n) * kd[3] if kd[0] == "n" else (64 * (un & 1) + 16 * n) * 1024 + 64 * (un >> 1)
            A(f"s_add_u32 m0, s{sM0}, {(i % 8)*4096 + n*1024}"); A(f"s_add_u32 s{sA}, s{kd[2]}, {so}")
            A(f"buffer_load_dwordx4 {v(vS1 if kd[0] == 'n' else vS2)}, {s(kd[1],4)}, s{sA} offen lds", tag=("u", i))
    A("s_barrier")
    for i in range(8): dma(i)
    for i in range(16):
        half, kd, un = units[i]
        A.wait_tag(("u", i))
        for n in range(4):
            for p in range(2):
                A(f"ds_read_b64_tr_b16 {a(128*half + 16*un + 4*n + 2*p, 2)}, {v(vTRA)} offset:{(i % 8)*4096 + n*1024 + p*256}")
        A.wait(lg=0)
        if i < 8: dma(i + 8)
    A("s_barrier")

def need_ln(A, cfg, nm, sseg):
    A(f"s_bitcmp1_b64 {s(sLN,2)}, s{sseg}"); A(f"s_cbranch_scc1 {nm}_ok")
    A.label(f"{nm}_poll")
    A(f"global_load_dwordx2 {v(vT0,2)}, {v(vZ)}, s[6:7] offset:128 sc1")
    A(f"v_readfirstlane_b32 s{sLN}, {v(vT0)}"); A(f"v_readfirstlane_b32 s{sLN+1}, {v(vT1)}"); A("s_nop 3")
    A(f"s_bitcmp1_b64 {s(sLN,2)}, s{sseg}"); A(f"s_cbranch_scc1 {nm}_ok")
    spin(A, f"{nm}_poll", cfg)
    A.label(f"{nm}_ok")

def act_dma(A, off, sseg, sbuf):
    A(f"s_lshl_b32 s{sA}, s{sseg}, 15"); A(f"s_lshl_b32 s{sB}, s{sWV}, 13"); A(f"s_add_u32 s{sA}, s{sA}, s{sB}"); A(f"s_add_u32 s{sA}, s{sA}, {off}")
    A(f"s_add_u32 s{sB}, s{sB}, s{sbuf}")
    for hf in range(2):
        A(f"s_add_u32 m0, s{sB}, {hf*4096}"); A(f"s_add_u32 s{sC}, s{sA}, {hf*4096}")
        for n in range(4): A(f"buffer_load_dwordx4 {v(vL16)}, {s(sWS,4)}, s{sC} offen offset:{n*1024} sc1 lds", tag="act")

def gemm1(A, two, c0="0"):
    A(f"v_add_u32 {v(vT2)}, s{sBUF}, {v(vL16)}")
    rd = lambda k: f"ds_read_b128 {v(BR+4*(k % 8),4)}, {v(vT2)} offset:{k*1024}"
    for k in range(6): A(rd(k))
    for k in range(32):
        b = v(BR + 4 * (k % 8), 4)
        A(f"v_mfma_f32_32x32x16_bf16 {v(AC1,16)}, {a(4*k,4)}, {b}, {v(AC1,16) if k else c0}")
        if k + 6 < 32: A(rd(k + 6))
        if two: A(f"v_mfma_f32_32x32x16_bf16 {v(AC2,16)}, {b}, {a(128+4*k,4)}, {v(AC2,16) if k else 0}")

def pack(A, dst, src):
    for i in range(8): A(f"v_cvt_pk_bf16_f32 {v(dst+i)}, {v(src+2*i)}, {v(src+2*i+1)}")

def exchange(A, src):
    A(f"s_lshl_b32 s{sA}, s{sWV}, 11"); A(f"v_add_u32 {v(vT2)}, s{sA}, {v(vRD)}")
    for ap in range(2): A(f"ds_write_b128 {v(vT2)}, {v(src+4*ap,4)} offset:{ap*1024}")
    A.wait(lg=0); A("s_barrier")
    for k in range(8): A(f"ds_read_b128 {v(BR+4*k,4)}, {v(vRD)} offset:{k*1024}")

def gemm2(A):
    A(f"s_mul_i32 s{sA}, s{sSEG}, {SEGP}"); A(f"s_mul_i32 s{sB}, s{sWV}, {8*CHUNK}"); A(f"s_add_u32 s{sA}, s{sA}, s{sB}")
    A(f"s_lshl_b32 s{sB}, s{sSRC}, 10"); A(f"s_add_u32 s{sA}, s{sA}, s{sB}"); A(f"s_add_u32 s{sA}, s{sA}, {PART_OFF}")
    def out(ct):
        r = G2 + 16 * (ct & 1); o = []
        for ap in range(2):
            o += [f"v_cvt_pk_bf16_f32 {v(r+8*ap+i)}, {v(r+8*ap+2*i)}, {v(r+8*ap+2*i+1)}" for i in range(4)]
            o += [f"buffer_store_dwordx4 {v(r+8*ap,4)}, {v(vST)}, {s(sWS,4)}, s{sA} offen offset:{(2*ct+ap)*128} sc1"]
        return o
    for ct in range(4):
        r = v(G2 + 16 * (ct & 1), 16); pend = out(ct - 1) if ct else []
        for k in range(8):
            A(f"v_mfma_f32_32x32x16_bf16 {r}, {a(128+32*ct+4*k,4)}, {v(BR+4*k,4)}, {r if k else 0}")
            if k in (2, 4):
                for x in pend[:5]: A(x)
                pend = pend[5:]
    for x in out(3): A(x)

def flag(A, nm, base, shift_seg, sidx, sh):
    A(f"s_cmp_lg_u32 s{sWV}, 0"); A(f"s_cbranch_scc1 {nm}")
    A(f"s_lshl_b32 s{sA}, s{sPREV}, {shift_seg}"); A(f"s_lshl_b32 s{sB}, s{sidx}, {sh}"); A(f"s_add_u32 s{sA}, s{sA}, s{sB}"); A(f"s_add_u32 s{sA}, s{sA}, {base}")
    A(f"v_mov_b32 {v(vT0)}, 1"); A("s_mov_b64 exec, 1"); A(f"buffer_store_dword {v(vT0)}, off, {s(sWS,4)}, s{sA} sc1"); A("s_mov_b64 exec, -1")
    A.label(nm)

def wait_flags(A, cfg, nm, base, n):
    A(f"s_lshl_b32 s{sA}, s{sSEG}, 7"); A(f"s_add_u32 s{sA}, s{sA}, {base}")
    A(f"v_min_u32 {v(vT1)}, {n-1}, {v(vL)}"); A(f"v_lshlrev_b32 {v(vT1)}, 2, {v(vT1)}")
    A.label(nm)
    A(f"buffer_load_dword {v(vT0)}, {v(vT1)}, {s(sWS,4)}, s{sA} offen sc1")
    A(f"v_cmp_ne_u32 vcc, 1, {v(vT0)}"); A(f"s_cbranch_vccz {nm}_ok")
    spin(A, nm, cfg)
    A.label(f"{nm}_ok")

def seg_loop(A, cfg, nm, off, step, body, fl):
    A(f"s_mov_b32 s{sBUF}, 0"); need_ln(A, cfg, nm + "_l0", sSEG); act_dma(A, off, sSEG, sBUF)
    A.wait(vm=0); A("s_barrier")
    A.label(nm + "_top")
    A(f"s_add_u32 s{sD}, s{sSEG}, {step}"); A(f"s_cmp_ge_u32 s{sD}, s{sEND}"); A(f"s_cbranch_scc1 {nm}_nn")
    need_ln(A, cfg, nm + "_l1", sD); A(f"s_xor_b32 s{sE}, s{sBUF}, 32768"); act_dma(A, off, sD, sE)
    A.label(nm + "_nn"); A.vmq = []
    body()
    A(f"s_mov_b32 s{sPREV}, s{sSEG}")
    A.wait(vm=0); A("s_barrier")
    fl()
    A(f"s_xor_b32 s{sBUF}, s{sBUF}, 32768"); A(f"s_add_u32 s{sSEG}, s{sSEG}, {step}"); A(f"s_cmp_lt_u32 s{sSEG}, s{sEND}"); A(f"s_cbranch_scc1 {nm}_top")

def worker(A, cfg):
    def TS(n):
        if cfg.get("wstamp"): A(f"s_memrealtime s[{70+2*n}:{71+2*n}]", tag="stamp")
    srd(A, sXR, 0, 2097152); srd(A, sOUT, 96, 2097152); srd(A, sW1, 24, 4194304); srd(A, sW2, 32, 4194304)
    A(f"v_and_b32 {v(vL)}, 63, v0"); A(f"v_mov_b32 {v(vZ)}, 0"); A(f"v_lshlrev_b32 {v(vL16)}, 4, {v(vL)}")
    A(f"s_mov_b32 s{sSPIN}, 0"); A(f"s_mov_b64 {s(sLN,2)}, 0"); A(f"s_lshl_b32 s{sM0}, s{sWV}, 15")
    A(f"s_mul_i32 s{sH}, s{sU}, 9363"); A(f"s_lshr_b32 s{sH}, s{sH}, 16"); A(f"s_mul_i32 s{sT}, s{sH}, 7"); A(f"s_sub_u32 s{sT}, s{sU}, s{sT}")
    A.wait(lg=0)
    A(f"s_cmp_ge_u32 s{sU}, 64"); A("s_cbranch_scc1 Wln_done")
    layer_norm(A, cfg)
    A.label("Wln_done"); A.vmq = []
    TS(0)
    bits(A, vS1, [(2, 4, 13), (0, 2, 4)])
    bits(A, vS2, [(2, 2, 10), (4, 1, 13), (5, 1, 12), (0, 2, 4)])
    bits(A, vTRA, [(5, 1, 9), (2, 2, 6), (4, 1, 5), (0, 2, 3)]); A(f"v_add_u32 {v(vTRA)}, s{sM0}, {v(vTRA)}")
    bits(A, vKA, [(5, 1, 9), (4, 1, 8), (3, 1, 6), (2, 1, 7), (0, 2, 4)])
    bits(A, vST, [(2, 3, 15), (2, 3, 14), (5, 1, 6), (0, 2, 4)])
    A(f"v_add_u32 {v(vRD)}, {EXC}, {v(vL16)}")
    for r in range(4): A(f"v_mov_b32 {v(AC1+r)}, -1")
    A(f"s_lshl_b32 s{sA}, s{sT}, 17"); A(f"s_lshl_b32 s{sB}, s{sH}, 12"); A(f"s_add_u32 s{sA}, s{sA}, s{sB}")
    A(f"s_lshl_b32 s{sB}, s{sWV}, 10"); A(f"s_add_u32 s{sA}, s{sA}, s{sB}"); A(f"s_add_u32 s{sA}, s{sA}, {KVM_OFF + (1 << 17)}")
    for i in range(10):
        A(f"buffer_store_dwordx4 {v(AC1,4)}, {v(vL16)}, {s(sWS,4)}, s{sA} offen sc1"); A(f"s_add_u32 s{sA}, s{sA}, {7 << 17}")
    A(f"s_lshl_b32 s{sD}, s{sH}, 8"); A(f"s_lshl_b32 s{sA}, s{sWV}, 6"); A(f"s_add_u32 s{sD}, s{sD}, s{sA}")
    load_weights(A, [("n", sW1, sD, 8192), ("n", sW2, sD, 8192)])
    TS(1)
    def kv_body():
        gemm1(A, True)
        A(f"s_lshl_b32 s{sA}, s{sSEG}, 19"); A(f"s_lshl_b32 s{sB}, s{sH}, 14"); A(f"s_add_u32 s{sA}, s{sA}, s{sB}")
        A(f"s_lshl_b32 s{sB}, s{sWV}, 12"); A(f"s_add_u32 s{sA}, s{sA}, s{sB}")
        for i in range(16): A(f"v_mul_f32 {v(AC1+i)}, {fb(CSC)}, {v(AC1+i)}")
        pack(A, AC1, AC1)
        for ap in range(2): A(f"buffer_store_dwordx4 {v(AC1+4*ap,4)}, {v(vKA)}, {s(sWS,4)}, s{sA} offen offset:{ap*1024} sc1")
        pack(A, AC2, AC2)
        for ap in range(2): A(f"buffer_store_dwordx4 {v(AC2+4*ap,4)}, {v(vL16)}, {s(sWS,4)}, s{sA} offen offset:{2048 + ap*1024} sc1")
    A(f"s_mov_b32 s{sSEG}, s{sT}"); A(f"s_mov_b32 s{sEND}, 64")
    seg_loop(A, cfg, "Wkv", XN_OFF, 7, kv_body, lambda: flag(A, "Wkv_f", KVF, 2, sH, 8))
    TS(2)
    srd(A, sW1, 64, 512 * 1792 * 2); srd(A, sW2, 80, 1792 * 512 * 2); A(f"s_load_dwordx2 s[4:5], s[0:1], 72")
    A(f"s_lshr_b32 s{sSRC}, s{sU}, 4")
    A(f"v_lshrrev_b32 {v(vT0)}, 2, {v(vL)}"); A(f"v_mul_u32_u24 {v(vS1)}, 3584, {v(vT0)}"); A(f"v_and_b32 {v(vT0)}, 3, {v(vL)}"); A(f"v_lshl_add_u32 {v(vS1)}, {v(vT0)}, 4, {v(vS1)}")
    A(f"s_lshl_b32 s{sD}, s{sSRC}, 8"); A(f"s_lshl_b32 s{sA}, s{sWV}, 6"); A(f"s_add_u32 s{sD}, s{sD}, s{sA}")
    A(f"s_lshl_b32 s{sE}, s{sSRC}, 17"); A(f"s_lshl_b32 s{sA}, s{sWV}, 8"); A(f"s_add_u32 s{sE}, s{sE}, s{sA}")
    A(f"v_lshrrev_b32 {v(vT0)}, 5, {v(vL)}"); A(f"v_lshl_add_u32 {v(vT0)}, {v(vT0)}, 3, s{sD}")
    A.wait(lg=0)
    for q in range(4): A(f"global_load_dwordx2 {v(AC1+2*q,2)}, {v(vT0)}, s[4:5] offset:{16*q}")
    for i in range(8): A(f"v_lshlrev_b32 {v(MSK+2*i)}, 16, {v(AC1+i)}"); A(f"v_and_b32 {v(MSK+2*i+1)}, 0xffff0000, {v(AC1+i)}")
    load_weights(A, [("n", sW1, sD, 3584), ("k", sW2, sE)])
    TS(3)
    def mlp_body():
        gemm1(A, False, v(MSK, 16))
        k0, k1 = -2 * LOG2E * 0.7978845608028654, -2 * LOG2E * 0.7978845608028654 * 0.044715
        A(f"s_mov_b32 s{sA}, {fb(k0)}")
        for i in range(16): A(f"v_mul_f32 {v(AC2+i)}, {v(AC1+i)}, {v(AC1+i)}")
        for i in range(16): A(f"v_mul_f32 {v(AC2+i)}, {fb(k1)}, {v(AC2+i)}")
        for i in range(16): A(f"v_add_f32 {v(AC2+i)}, s{sA}, {v(AC2+i)}")
        for i in range(16): A(f"v_mul_f32 {v(AC2+i)}, {v(AC2+i)}, {v(AC1+i)}")
        for i in range(16): A(f"v_exp_f32 {v(AC2+i)}, {v(AC2+i)}")
        for i in range(16): A(f"v_add_f32 {v(AC2+i)}, 1.0, {v(AC2+i)}")
        for i in range(16): A(f"v_rcp_f32 {v(AC2+i)}, {v(AC2+i)}")
        for i in range(16): A(f"v_mul_f32 {v(AC1+i)}, {v(AC1+i)}, {v(AC2+i)}")
        pack(A, AC1, AC1); exchange(A, AC1); gemm2(A)
    A(f"s_and_b32 s{sSEG}, s{sU}, 15"); A(f"s_lshl_b32 s{sSEG}, s{sSEG}, 2"); A(f"s_add_u32 s{sEND}, s{sSEG}, 4"); A(f"s_add_u32 s{sSRC}, s{sSRC}, 32")
    seg_loop(A, cfg, "Wml", Y_OFF, 1, mlp_body, lambda: flag(A, "Wml_f", MF - 128, 7, sSRC, 2))
    TS(4)
    srd(A, sW1, 16, 4194304); srd(A, sW2, 40, 4194304); A(f"s_load_dwordx2 s[4:5], s[0:1], 88")
    bits(A, vS1, [(2, 4, 13), (0, 2, 4)])
    A(f"s_lshl_b32 s{sD}, s{sH}, 8"); A(f"s_lshl_b32 s{sA}, s{sWV}, 6"); A(f"s_add_u32 s{sD}, s{sD}, s{sA}")
    A(f"s_lshl_b32 s{sE}, s{sH}, 17"); A(f"s_lshl_b32 s{sA}, s{sWV}, 8"); A(f"s_add_u32 s{sE}, s{sE}, s{sA}")
    A(f"v_and_b32 {v(vT1)}, 31, {v(vL)}"); A(f"v_lshrrev_b32 {v(vT0)}, 5, {v(vL)}"); A(f"v_lshlrev_b32 {v(vT0)}, 2, {v(vT0)}"); A(f"v_sub_u32 {v(vT1)}, {v(vT1)}, {v(vT0)}")
    A(f"v_mov_b32 {v(vT0)}, {fb(-1e9 * LOG2E)}")
    for i in range(16):
        A(f"v_cmp_gt_i32 vcc, {8*(i >> 2) + (i & 3)}, {v(vT1)}"); A(f"v_cndmask_b32 {v(MSK+i)}, 0, {v(vT0)}, vcc")
    A(f"v_and_b32 {v(vT1)}, 1, {v(vL)}"); A(f"v_lshlrev_b32 {v(vT1)}, 4, {v(vT1)}"); A(f"v_mov_b32 {v(vT0)}, 0x3f80"); A(f"v_lshlrev_b32 {v(vT1)}, {v(vT1)}, {v(vT0)}")
    A(f"v_bfe_u32 {v(vT0)}, {v(vL)}, 1, 3")
    for r in range(4): A(f"v_cmp_eq_u32 vcc, {2*r}, {v(vT0)}"); A(f"v_cndmask_b32 {v(SEL+r)}, 0, {v(vT1)}, vcc")
    bits(A, vXO, [(3, 1, 5), (2, 1, 3), (5, 1, 4), (4, 1, 2)])
    A(f"s_lshr_b32 s{sA}, s{sH}, 3"); A(f"s_lshl_b32 s{sA}, s{sA}, 8"); A(f"s_lshl_b32 s{sB}, s{sWV}, 6"); A(f"s_add_u32 s{sA}, s{sA}, s{sB}"); A(f"v_add_u32 {v(vXO)}, s{sA}, {v(vXO)}")
    A.wait(lg=0)
    A(f"global_load_dword {v(vT1)}, {v(vXO)}, s[4:5]")
    A(f"v_lshlrev_b32 {v(B2)}, 16, {v(vT1)}"); A(f"v_and_b32 {v(B2+1)}, 0xffff0000, {v(vT1)}")
    A(f"v_and_b32 {v(vT0)}, 3, {v(vL)}"); A(f"v_lshl_add_u32 {v(vXO)}, {v(vT0)}, 10, {v(vXO)}")
    A(f"s_and_b32 s{sA}, s{sH}, 7"); A(f"s_lshl_b32 s{sA}, s{sA}, 12"); A(f"v_add_u32 {v(vXO)}, s{sA}, {v(vXO)}")
    load_weights(A, [("n", sW1, sD, 8192), ("k", sW2, sE)])
    TS(5)
    vPR, vPL = vS1, vS2
    bits(A, vPR, [(4, 2, 10), (0, 4, 4)]); A(f"s_lshl_b32 s{sA}, s{sWV}, 8"); A(f"v_add_u32 {v(vPR)}, s{sA}, {v(vPR)}")
    A(f"v_lshrrev_b32 {v(vT0)}, 5, {v(vL)}"); A(f"v_lshl_add_u32 {v(vPL)}, {v(vT0)}, 30, {v(vPR)}")
    bits(A, vKM, [(5, 1, 8), (0, 3, 4)], KVL)
    bits(A, vVM, [(3, 1, 9), (5, 1, 8), (4, 1, 7), (0, 3, 4)], KVL + 8); A(f"s_lshl_b32 s{sA}, s{sWV}, 10"); A(f"v_add_u32 {v(vVM)}, s{sA}, {v(vVM)}")
    A(f"v_mov_b64 {v(VM+2,2)}, 0"); A(f"v_mov_b64 {v(PM+2,2)}, 0")
    def part_base():
        A(f"s_mul_i32 s{sA}, s{sSEG}, {SEGP}"); A(f"s_mul_i32 s{sB}, s{sH}, {CHUNK}"); A(f"s_add_u32 s{sA}, s{sA}, s{sB}"); A(f"s_add_u32 s{sA}, s{sA}, {PART_OFF}")
    def sum_sources(acc, land, ns):
        for n in ns:
            A(f"s_add_u32 s{sB}, s{sA}, {n*4096}"); A(f"buffer_load_dwordx4 {v(land+4*(n % 8),4)}, {v(vPL if n == 11 else vPR)}, {s(sWS,4)}, s{sB} offen sc1")
        for n in ns: A(f"v_mfma_f32_16x16x32_bf16 {v(acc,4)}, {v(SEL,4)}, {v(land+4*(n % 8),4)}, {v(acc,4) if n != ns[0] else 0}")
    def att_body():
        A(f"s_lshl_b32 s{sA}, s{sSEG}, 19"); A(f"s_lshl_b32 s{sB}, s{sH}, 14"); A(f"s_add_u32 s{sA}, s{sA}, s{sB}")
        A(f"s_lshl_b32 s{sB}, s{sWV}, 12"); A(f"s_add_u32 s{sC}, s{sA}, s{sB}")
        for k in range(8):
            A(f"buffer_load_dwordx4 {v(KF+4*k,4)}, {v(vKA)}, {s(sWS,4)}, s{sA} offen offset:{(k & 1)*1024} sc1")
            if k & 1: A(f"s_add_u32 s{sA}, s{sA}, 4096")
        for ap in range(2): A(f"buffer_load_dwordx4 {v(VF+4*ap,4)}, {v(vL16)}, {s(sWS,4)}, s{sC} offen offset:{2048 + ap*1024} sc1")
        A(f"s_lshl_b32 s{sA}, s{sSEG}, 15"); A(f"buffer_load_dword {v(XV)}, {v(vXO)}, {s(sXR,4)}, s{sA} offen")
        gemm1(A, False); pack(A, AC1, AC1); exchange(A, AC1)
        for k in range(8): A(f"v_mfma_f32_32x32x16_bf16 {v(AC2,16)}, {v(KF+4*k,4)}, {v(BR+4*k,4)}, {v(AC2,16) if k else v(MSK,16)}")
        A.wait(vm=0)
        wait_flags(A, cfg, "Wat_mf", MF, 14); part_base(); sum_sources(GA, KM, [8, 9, 10, 11])
        MX = vT3
        A(f"v_max3_f32 {v(MX)}, {v(AC2)}, {v(AC2+1)}, {v(AC2+2)}")
        for i in range(3, 15, 2): A(f"v_max3_f32 {v(MX)}, {v(MX)}, {v(AC2+i)}, {v(AC2+i+1)}")
        A(f"v_max_f32 {v(MX)}, {v(MX)}, {v(AC2+15)}")
        for r in range(2): A(f"v_add_f32 {v(GA+r)}, {v(GA+r)}, {v(B2+r)}")
        for r in range(2): A(f"v_mul_f32 {v(GA+2+r)}, {fb(-LOG2E)}, {v(GA+r)}")
        for r in range(2): A(f"v_exp_f32 {v(GA+2+r)}, {v(GA+2+r)}")
        for r in range(2): A(f"v_add_f32 {v(GA+2+r)}, 1.0, {v(GA+2+r)}")
        for r in range(2): A(f"v_rcp_f32 {v(GA+2+r)}, {v(GA+2+r)}")
        for r in range(2): A(f"v_mul_f32 {v(GA+r)}, {v(GA+r)}, {v(GA+2+r)}")
        A(f"v_and_b32 {v(XV+1)}, 0xffff0000, {v(XV)}"); A(f"v_lshlrev_b32 {v(XV)}, 16, {v(XV)}")
        A(f"s_lshl_b32 s{sA}, s{sSEG}, 17"); A(f"s_lshl_b32 s{sB}, s{sH}, 12"); A(f"s_add_u32 s{sA}, s{sA}, s{sB}")
        A(f"s_lshl_b32 s{sB}, s{sWV}, 10"); A(f"s_add_u32 s{sA}, s{sA}, s{sB}"); A(f"s_add_u32 s{sA}, s{sA}, {KVM_OFF + (1 << 17)}")
        A(f"s_add_u32 s{sB}, s{sB}, {KVL}"); A(f"v_add_u32 {v(vT2)}, s{sB}, {v(vL16)}")
        A.label("Wat_km")
        A(f"buffer_load_dwordx4 {v(KM,4)}, {v(vL16)}, {s(sWS,4)}, s{sA} offen sc1")
        A(f"ds_write_b128 {v(vT2)}, {v(KM,4)}")
        A(f"v_max3_u32 {v(vT0)}, {v(KM)}, {v(KM+1)}, {v(KM+2)}"); A(f"v_max_u32 {v(vT0)}, {v(vT0)}, {v(KM+3)}")
        A(f"v_cmp_eq_u32 vcc, -1, {v(vT0)}"); A("s_cbranch_vccz Wat_km_ok")
        spin(A, "Wat_km", cfg)
        A.label("Wat_km_ok")
        A.wait(lg=0); A("s_barrier")
        for k in range(8):
            for t in range(2): A(f"ds_read_b64 {v(KM+4*k+2*t,2)}, {v(vKM)} offset:{(2*((k >> 1) & 1) + t)*1024 + (k & 1)*512 + (k >> 2)*128}")
            if k == 3: A(f"v_mfma_f32_32x32x16_bf16 {v(SMA,16)}, {v(KM,4)}, {v(BR,4)}, 0")
        A(f"ds_read_b64 {v(VM,2)}, {v(vVM)}")
        for k in range(1, 8): A(f"v_mfma_f32_32x32x16_bf16 {v(SMA,16)}, {v(KM+4*k,4)}, {v(BR+4*k,4)}, {v(SMA,16)}")
        for r in range(4): A(f"v_mul_f32 {v(SMA+r)}, {fb(CSC)}, {v(SMA+r)}")
        A(f"v_max3_f32 {v(MX)}, {v(MX)}, {v(SMA)}, {v(SMA+1)}"); A(f"v_max3_f32 {v(MX)}, {v(MX)}, {v(SMA+2)}, {v(SMA+3)}")
        A(f"v_mov_b32 {v(vT0)}, {v(MX)}"); A(f"v_permlane32_swap_b32 {v(MX)}, {v(vT0)}"); A(f"v_max_f32 {v(MX)}, {v(MX)}, {v(vT0)}")
        sc = [AC2 + i for i in range(16)] + [SMA + r for r in range(4)]
        for r in sc: A(f"v_sub_f32 {v(r)}, {v(r)}, {v(MX)}")
        for r in sc: A(f"v_exp_f32 {v(r)}, {v(r)}")
        PB = KM
        pack(A, PB, AC2); A(f"v_cvt_pk_bf16_f32 {v(PM)}, {v(SMA)}, {v(SMA+1)}"); A(f"v_cvt_pk_bf16_f32 {v(PM+1)}, {v(SMA+2)}, {v(SMA+3)}")
        A(f"v_mfma_f32_32x32x16_bf16 {v(AC1,16)}, {v(VF,4)}, {v(PB,4)}, 0")
        for i in range(0, 8, 2): A(f"v_add_f32 {v(sc[i])}, {v(sc[i])}, {v(sc[i+1])}")
        A(f"v_mfma_f32_32x32x16_bf16 {v(AC1,16)}, {v(VF+4,4)}, {v(PB+4,4)}, {v(AC1,16)}")
        for i in range(8, 20, 2): A(f"v_add_f32 {v(sc[i])}, {v(sc[i])}, {v(sc[i+1])}")
        A(f"v_mfma_f32_32x32x16_bf16 {v(AC1,16)}, {v(VM,4)}, {v(PM,4)}, {v(AC1,16)}")
        for i in range(2, 20, 2): A(f"v_add_f32 {v(sc[0])}, {v(sc[0])}, {v(sc[i])}")
        A(f"v_mov_b32 {v(vT0)}, {v(sc[0])}"); A(f"v_permlane32_swap_b32 {v(sc[0])}, {v(vT0)}"); A(f"v_add_f32 {v(vT0)}, {v(sc[0])}, {v(vT0)}"); A(f"v_rcp_f32 {v(vT0)}, {v(vT0)}")
        for i in range(0, 16, 2): A(f"v_pk_mul_f32 {v(AC1+i,2)}, {v(AC1+i,2)}, {v(vT0,2)} op_sel_hi:[1,0]")
        pack(A, AC1, AC1); exchange(A, AC1); gemm2(A)
    def att_fin():
        flag(A, "Wat_f", AF, 7, sH, 2)
        wait_flags(A, cfg, "Wat_af", AF, 32); part_base(); sum_sources(RA, KM, list(range(8)))
        for r in range(2): A(f"v_fmac_f32 {v(XV+r)}, {v(RA+r)}, {v(GA+r)}")
        A(f"v_cvt_pk_bf16_f32 {v(XV)}, {v(XV)}, {v(XV+1)}")
        A(f"s_lshl_b32 s{sA}, s{sSEG}, 15"); A(f"buffer_store_dword {v(XV)}, {v(vXO)}, {s(sOUT,4)}, s{sA} offen")
    A(f"s_mov_b32 s{sSEG}, s{sT}"); A(f"s_mov_b32 s{sEND}, 64"); A(f"s_mov_b32 s{sSRC}, s{sH}")
    seg_loop(A, cfg, "Wat", XN_OFF, 7, att_body, att_fin)
    TS(6)
```

```python
import sys; sys.path.insert(0,"work")
from gen import *
import team as TM, worker as WK
NAME = "recurrent_scan__memory_aug_recurrent_mem_tr__mixer_channel_mlp__prompt"
BEST = dict(burst=True, x1=[[30],[50],[70],[90]], d2=[50,50,40,16], g2=[[],[],[],[10,10,10]], tp=[(0,37,0)]*4)
def kernel(cfg):
    A = Asm(cfg.get("verbose")); meas = cfg.get("meas")
    A("s_cmp_ge_u32 s2, 256"); A("s_cbranch_scc1 Lexit")
    if meas: A("s_memrealtime s[56:57]", tag="stamp")
    A("s_load_dwordx2 s[6:7], s[0:1], 104"); A("s_load_dwordx2 s[8:9], s[0:1], 112")
    A("v_lshrrev_b32 v1, 6, v0"); A("s_mov_b32 s10, 0x10000000"); A("s_mov_b32 s11, 0x20000"); A("v_readfirstlane_b32 s17, v1")
    if meas:
        for r in range(90, 102): A(f"s_mov_b32 s{r}, 0")
    A("s_and_b32 s3, s2, 7"); A("s_lshr_b32 s16, s2, 3")
    A.wait(lg=0)
    if meas: A("s_mov_b32 s69, s56")
    A("s_cmp_eq_u32 s3, 0"); A("s_cbranch_scc1 Lteam")
    A("s_sub_u32 s3, s3, 1"); A("s_lshl_b32 s3, s3, 5"); A("s_add_u32 s16, s16, s3")
    WK.worker(A, cfg)
    def dump(A, regs, slot):
        A.wait(vm=0, lg=0)
        for j, r in enumerate(regs): A(f"v_mov_b32 v{20+j}, s{r}")
        A(f"s_lshl_b32 s19, s2, 8"); A(f"s_add_u32 s19, s19, {slot}"); A(f"s_add_u32 s19, s19, {200<<20}")
        for j in range(4): A(f"buffer_store_dwordx4 v[{20+4*j}:{23+4*j}], off, s[8:11], s19 offset:{16*j}")
        A.wait(vm=0)
    if meas:
        A("s_lshl_b32 s17, s17, 6"); dump(A, [69, 70, 72, 74, 76, 78, 80, 82, WK.sSPIN] + [69] * 7, "s17")
    A.label("Lexit"); A("s_endpgm")
    A.forget(); A.label("Lteam")
    def fin(A, w):
        if meas:
            A("s_memrealtime s[88:89]"); A("s_memtime s[62:63]"); A.wait(lg=0); A("s_sub_u32 s62, s62, s64")
            dump(A, [69, 66, 60, 88, 62, 99, 100, TM.sGIVE, TM.sSPIN] + [69] * 7, w * 64)
        A("s_endpgm")
    TM.team(A, cfg, fin)
    return A.text()
def full_text(cfg):
    ref = open(f"cdna_kernels/{NAME}.s.ref").read()
    head = ref[:ref.index("; Override launch geometry")]
    t = head + "; One workgroup per CU: 32 carry the recurrence (one head each), 224 do everything that is parallel over tokens.\n"
    t += "; @launch grid=(256,1,1) block=(256,1,1) lds=163840\n"
    t += f'.amdgcn_target "amdgcn-amd-amdhsa--gfx950"\n.text\n.globl {NAME}_kernel\n.p2align 8\n.type {NAME}_kernel,@function\n{NAME}_kernel:\n'
    t += kernel(cfg)
    t += f'''.section .rodata,"a"
.p2align 6
.amdhsa_kernel {NAME}_kernel
  .amdhsa_next_free_vgpr 512
  .amdhsa_next_free_sgpr 102
  .amdhsa_accum_offset 256
  .amdhsa_group_segment_fixed_size 0
  .amdhsa_kernarg_size 120
  .amdhsa_user_sgpr_count 2
  .amdhsa_user_sgpr_kernarg_segment_ptr 1
  .amdhsa_system_sgpr_workgroup_id_x 1
.end_amdhsa_kernel
'''
    return t
if __name__ == "__main__":
    cfg = dict(BEST); cfg["meas"] = False
    if len(sys.argv) > 2: cfg.update(eval(sys.argv[2]))
    out = sys.argv[1] if len(sys.argv) > 1 else f"cdna_kernels/{NAME}.s"
    open(out, "w").write(full_text(cfg)); print("wrote", out)
```

```python
from gen import *
import struct

X = 131072
KV_OFF, KVM_OFF, IN1_OFF = 0, 33 << 20, (50 << 20) + X
MEM_OFF = IN1_OFF + (512 << 10)
NOT_OFF = MEM_OFF + (32 << 10)
MEMB, QT, PX, OX, SEL, MXB = 0, 8192, 12800, 14336, 20480, 21504
QS = 1088
CSC = 0.12751743032665168
NSEG = 64

vIDX, vL16, vWL, vVX, vKW, vTR, vOR, vS1, vPUB, vKX, vTOUCH, vJ0, vOW = range(0, 13)
vJ1 = 15
vSEN, vLa, vLb = 13, 14, 15
A0 = 16
QA, KA, VA = 48, 56, 64
KX, VX = 72, 80
T = 88
LAND = [KX, VX, T, T + 8, T + 16, T + 24, T + 32]
sWS, sW2 = 8, 12
sH, sSTEP, sKV, sKVM, sST1, sST1b, sLD1, sRS1, sPUB, sRS2, sLD2, sSPIN, sGIVE, sT0, sT1, sC = range(16, 32)
sC2 = 32
sLO, sHI = 34, 35
sONE, sHLF, sTAG, sSPN2, sMSK, sKVb, sKVt = 42, 44, 46, 47, 48, 50, 51
sKM, sKF = 52, 54
KVF = 56 << 20

ORDER = 'qkvo'
def frag_places(w):
    lu = [("q", 0), ("q", 1), ("q", 2), ("k", 0), ("k", 1), ("k", 2), ("o", 6), ("o", 7)]
    units = [(m, n) for m in ORDER for n in range(8) if (m, n) not in lu] + lu
    place = {}; r = 128; frs = []
    for k, (m, n) in enumerate(units):
        fr = [(m, t, n) for t in range(2)] if m != "o" else [("o", n >> 1, (2 * (n & 1) + fi - w) & 3) for fi in range(2)]
        for fi, f in enumerate(fr):
            if k < 24: place[f] = r; r += 8
            else: place[f] = ("lds", 2 * (k - 24) + fi)
        frs.append(fr)
    assert r == 512
    return place, units, frs

def entry_loads(A):
    A(f"s_load_dwordx4 s[40:43], s[0:1], 16"); A(f"s_load_dwordx4 s[44:47], s[0:1], 32"); A(f"s_load_dwordx2 s[48:49], s[0:1], 8")

def prologue(A, w, cfg):
    place, units, frs = frag_places(w)
    L, t0, t1, t2 = 100, 101, 102, 103
    vPS, vOS, vP, vO = 104, 108, 120, 124
    if cfg.get("alone"): entry_loads(A)
    A(f"v_and_b32 {v(L)}, 63, v0")
    def bits(dst, terms, const=0):
        A(f"v_mov_b32 {v(dst)}, {const}")
        for (b, n, sh) in terms:
            A(f"v_bfe_u32 {v(t0)}, {v(L)}, {b}, {n}"); A(f"v_lshl_add_u32 {v(dst)}, {v(t0)}, {sh}, {v(dst)}")
    A(f"v_lshrrev_b32 {v(t1)}, 1, {v(L)}"); A(f"v_and_b32 {v(t1)}, 8, {v(t1)}"); A(f"v_xor_b32 {v(t1)}, {v(t1)}, {v(L)}"); A(f"v_and_b32 {v(t1)}, 15, {v(t1)}"); A(f"v_lshlrev_b32 {v(t1)}, 4, {v(t1)}")
    A(f"v_lshrrev_b32 {v(t2)}, 4, {v(L)}")
    A(f"v_lshl_add_u32 {v(vPS)}, {v(t2)}, 13, {v(t1)}"); A(f"v_lshl_add_u32 {v(vOS)}, {v(t2)}, 10, {v(t1)}")
    for n in range(1, 4): A(f"v_xor_b32 {v(vPS+n)}, {(n & 1)*64 + (n >> 1)*16}, {v(vPS)}")
    A(f"v_xor_b32 {v(vOS+1)}, 64, {v(vOS)}")
    base = {"q": 52, "k": 56, "v": 60, "o": 64}
    for i, m in enumerate("qkvo"): A(f"s_mov_b32 s{base[m]+2}, 0x400000"); A(f"s_mov_b32 s{base[m]+3}, 0x20000")
    A(f"s_lshl_b32 s50, s{sH}, 8"); A(f"s_lshl_b32 s51, s{sH}, 17")
    A.wait(lg=0)
    for i, m in enumerate("qkvo"): A(f"s_mov_b64 {s(base[m],2)}, {s(40+2*i,2)}")
    def dma(un):
        m, k = units[un]
        for n in range(4):
            row = 16 * w + 4 * n
            if m != "o": so = (64 * k + row) * 8192; sb = 50; vs = vPS + n
            else: so = (64 * (k & 1) + row) * 1024 + 256 * (k >> 1); sb = 51; vs = vOS + (n >> 1)
            A(f"s_mov_b32 m0, {w*32768 + (un % 8)*4096 + n*1024}"); A(f"s_add_u32 s{sT0}, s{sb}, {so}")
            A(f"buffer_load_dwordx4 {v(vs)}, {s(base[m],4)}, s{sT0} offen {cfg.get('wfl','')} lds", tag=("u", un))
    def PS(n):
        if cfg.get("pstamp"): A(f"s_memrealtime s[{70+2*n}:{71+2*n}]", tag="stamp")
    def c_o():
        bits(vO, [(2, 1, 8), (5, 1, 10), (4, 1, 11), (2, 1, 7), (4, 1, 6), (3, 1, 5), (0, 2, 3)])
        A(f"v_xor_b32 {v(vO)}, {w*64}, {v(vO)}"); A(f"v_add_u32 {v(vO+1)}, 65536, {v(vO)}")
    PS(0)
    dma(0); dma(1)
    bits(vP, [(2, 1, 8), (4, 1, 10), (3, 1, 11), (5, 1, 15), (2, 1, 7), (4, 1, 6), (1, 1, 5), (3, 1, 4), (0, 1, 3)])
    A(f"v_xor_b32 {v(vP)}, {w*64}, {v(vP)}"); A(f"v_xor_b32 {v(vP+1)}, 16, {v(vP)}")
    for k in range(2): A(f"v_add_u32 {v(vP+2+k)}, 65536, {v(vP+k)}")
    LA = cfg.get('look', 4)
    c_o()
    for un in range(2, LA): dma(un)
    PS(1)
    def c_mem0():
        bits(t2, [(4, 2, 10), (0, 2, 2)], 256 * w)
        A(f"s_and_b32 s{sT0}, s{sH}, 1"); A(f"s_lshl_b32 s{sT0}, s{sT0}, 12"); A(f"s_lshr_b32 s{sT1}, s{sH}, 1"); A(f"s_lshl_b32 s{sT1}, s{sT1}, 4")
        A(f"s_add_u32 s{sT0}, s{sT0}, s{sT1}"); A(f"v_add_u32 {v(t2)}, s{sT0}, {v(t2)}")
        A(f"global_load_dword {v(110)}, {v(t2)}, s[48:49]")
    def c_in1():
        bits(vL16, [(0, 6, 4)], X)
        for r in range(4): A(f"v_mov_b32 {v(112+r)}, -1")
        A(f"s_lshl_b32 s{sLD1}, s{sH}, 13"); A(f"s_add_u32 s{sLD1}, s{sLD1}, {IN1_OFF + w*2048 - X}")
        A(f"s_xor_b32 s{sRS1}, s{sLD1}, {256<<10}")
        for sr in (sLD1, sRS1):
            for n in range(2): A(f"buffer_store_dwordx4 {v(112,4)}, {v(vL16)}, {s(sWS,4)}, s{sr} offen offset:{n*1024} sc1")
    def c_ring():
        bits(vPUB, [(4, 2, 4), (0, 2, 2), (2, 1, 30)])
        A(f"v_bfe_u32 {v(t0)}, {v(L)}, 3, 1"); A(f"v_lshlrev_b32 {v(t0)}, 30, {v(t0)}"); A(f"v_or_b32 {v(vPUB)}, {v(t0)}, {v(vPUB)}")
        A(f"s_lshl_b32 s{sPUB}, s{sH}, 6"); A(f"s_add_u32 s{sPUB}, s{sPUB}, {MEM_OFF + w*2048}")
        for sl in (1, 2, 3):
            A(f"s_add_u32 s{sT0}, s{sPUB}, {sl*8192}"); A(f"buffer_store_dword {v(112)}, {v(vPUB)}, {s(sWS,4)}, s{sT0} offen sc1")
        A(f"buffer_store_dword {v(110)}, {v(vPUB)}, {s(sWS,4)}, s{sPUB} offen sc1")
    def c_sel():
        bits(t2, [(0, 2, 2), (2, 2, 0)])
        A(f"v_and_b32 {v(t1)}, 1, {v(t2)}"); A(f"v_lshlrev_b32 {v(t1)}, 4, {v(t1)}"); A(f"v_mov_b32 {v(t0)}, 0x3f80"); A(f"v_lshlrev_b32 {v(t1)}, {v(t1)}, {v(t0)}")
        A(f"v_lshrrev_b32 {v(t2)}, 1, {v(t2)}")
        for r in range(4):
            A(f"v_cmp_eq_u32 vcc, {r}, {v(t2)}"); A(f"v_cndmask_b32 {v(112+r)}, 0, {v(t1)}, vcc")
        A(f"ds_write_b128 {v(vL16)}, {v(112,4)} offset:{SEL}")
        A(f"v_bfe_u32 {v(t0)}, {v(L)}, 3, 1"); A(f"v_mul_u32_u24 {v(t0)}, 0xaaaa, {v(t0)}"); A(f"v_add_u32 {v(vIDX)}, 0x4444, {v(t0)}")
    def c_scal():
        A(f"s_lshl_b32 s{sKV}, s{sH}, 14"); A(f"s_add_u32 s{sKV}, s{sKV}, {KV_OFF}")
        A(f"s_lshl_b32 s{sKVM}, s{sH}, 12"); A(f"s_add_u32 s{sKVM}, s{sKVM}, {KVM_OFF + w*1024 - X}")
        A(f"s_lshl_b32 s{sST1}, s{sH}, 6"); A(f"s_add_u32 s{sST1}, s{sST1}, {IN1_OFF - X + w*65536}")
        A(f"s_mov_b32 s{sSTEP}, 0"); A(f"s_mov_b32 s{sGIVE}, 0")
        A(f"s_mov_b32 s{sC2}, {struct.unpack('<I', struct.pack('<f', CSC))[0]:#x}")
        for r in range(2): A(f"s_mov_b32 s{sONE+r}, 0x3f803f80"); A(f"s_mov_b32 s{sHLF+r}, 0x3f003f00"); A(f"s_mov_b32 s{sMSK+r}, 0x00ff00ff")
        A(f"s_mov_b32 s{sLO}, {(127-60)<<23:#x}"); A(f"s_mov_b32 s{sHI}, {120<<23:#x}")
    chores = {0: c_mem0, 2: lambda: bits(vWL, [(0, 6, 4)], w * 32768), 3: lambda: bits(vKW, [(0, 4, 4), (4, 1, 3), (5, 1, 2)], X + QT + w * QS),
              4: lambda: bits(vTR, [(4, 2, 6), (2, 2, 4), (0, 1, 3), (1, 1, 11), (1, 1, 7)], X + QT), 5: lambda: bits(vOR, [(4, 2, 7), (4, 2, 8), (0, 3, 4)], X),
              6: lambda: bits(vOW, [(4, 2, 7), (4, 2, 8), (0, 4, 4)], X + OX + w * 1536), 7: lambda: bits(vS1, [(5, 1, 15), (3, 1, 14), (4, 1, 13), (0, 3, 3)], X),
              8: c_in1, 9: c_ring, 10: lambda: bits(vVX, [(4, 2, 9), (3, 1, 8), (0, 3, 4)], w * 4096 + 2048),
              11: lambda: bits(vKX, [(4, 2, 9), (3, 1, 13), (0, 3, 4)], w * 128), 12: c_sel, 13: c_scal}
    def settle(un):
        for q in range(4): A(f"ds_write_b128 {v(vWL)}, {v(A0+16*(un & 1)+4*q,4)} offset:{(un % 8)*4096 + q*1024}")
    for un in range(32):
        slot = un % 8
        A.wait_tag(("u", un)); A.wait(lg=0); A("s_barrier")
        if un % 8 == 0: PS(2 + un // 8)
        if un == 31: PS(6)
        if un == 17: cfg["arrive"](A, w)
        for fi, f in enumerate(frs[un]):
            dst = place[f] if un < 24 else A0 + 16 * (un & 1) + 8 * fi
            for p in range(4):
                if f[0] != "o": A(f"ds_read_b64_tr_b16 {u(dst+2*p,2)}, {v(vP + 2*(p>>1) + fi)} offset:{slot*4096 + (p&1)*512}")
                else: A(f"ds_read_b64_tr_b16 {u(dst+2*p,2)}, {v(vO+fi)} offset:{slot*4096 + (p&1)*512 + (p>>1)*32768}")
        if un > 24: settle(un - 1)
        if un + LA < 32: dma(un + LA)
        if un + LA == 32 and not cfg.get("alone"):
            A("v_mov_b32 v118, 0"); A(f"v_lshrrev_b32 {v(vJ0)}, 2, {v(vL16)}"); A(f"s_lshl_b32 s{sT0}, s{sH}, 8"); A(f"s_add_u32 s{sT0}, s{sT0}, {KVF - (X >> 2)}")
            A("global_load_dwordx2 v[114:115], v118, s[6:7] offset:128 sc1"); A("global_load_dwordx2 v[116:117], v118, s[6:7] sc1")
            A(f"buffer_load_dword {v(vJ0)}, {v(vJ0)}, {s(sWS,4)}, s{sT0} offen sc1")
        if un in chores: chores[un]()
    A.wait(lg=0); A("s_barrier"); settle(31)
    A.wait(lg=0)

def loop(A, w, cfg, sc):
    place = frag_places(w)[0]
    stamp = cfg.get("stamp")
    def ST(n):
        if stamp and n in stamp: k = stamp.index(n); A(f"s_memtime s[{70+2*k}:{71+2*k}]", tag="stamp")
    lab = lambda n: f"T{n}_{w}{sc}"
    def wread(f, reg):
        n = place[f][1]
        return [f"ds_read_b128 {v(reg+4*hh,4)}, {v(vWL)} offset:{n*2048 + hh*1024}" for hh in range(2)]
    L0, L1, L2, L3 = T, T + 8, T + 16, T + 24
    ONE, VB = T + 32, T + 36
    land = {("q",0,0): A0 + 24, ("q",1,0): VA, ("q",0,1): L0, ("q",1,1): L1, ("q",0,2): L2, ("q",1,2): L3,
            ("k",0,0): L0, ("k",0,1): L1, ("k",0,2): L2, ("k",1,0): L3, ("k",1,1): L0, ("k",1,2): L1,
            ("o",3,0): QA, ("o",3,1): KA, ("o",3,2): L3, ("o",3,3): L0}
    W = lambda f: u(land[f] if f in land else place[f], 8)
    wr = lambda f: wread(f, land[f])
    acc = {"q": QA, "k": KA, "v": VA}
    def sm(m, t, kk): return f"v_smfmac_f32_16x16x64_bf16 {v(acc[m]+4*t,4)}, {v(A0+4*kk,4)}, {W((m,t,kk))}, {v(vIDX)}"
    def put(y):
        if callable(y): y()
        elif isinstance(y, tuple): A(y[0], tag=y[1])
        else: A(y)
    def weave(mf, fill, nm="-", nxt=None):
        for i, x in enumerate(mf):
            A(x); ST(f"{nm}{i}")
            f = fill.get(i, []); nx = mf[i + 1] if i + 1 < len(mf) else nxt
            for k, y in enumerate(f):
                if k == len(f) - 1 and isinstance(y, str) and y.startswith("v_") and nx: A.prewait(nx, y)
                put(y)
    pw = lambda *x: (lambda: A.prewait(*x))
    def bar(tag):
        def f(): A.wait_tag(tag); A("s_barrier")
        return f
    zero = lambda r: f"v_mov_b64 {v(r,2)}, 0"
    ror = "row_ror:8 row_mask:0xf bank_mask:0xf"
    ad = lambda d, x, y: f"v_add_f32 {v(d)}, {v(x)}, {v(y)}"
    pk = lambda d, x, y: f"v_pk_add_f32 {v(d,2)}, {v(x,2)}, {v(y,2)}"
    sw = lambda x, y: f"v_permlane32_swap_b32 {v(x)}, {v(y)}"
    cv = lambda d, x: f"v_cvt_pk_bf16_f32 {v(d)}, {v(x)}, {v(x+1)}"
    trr = lambda dst, m, t, off: f"ds_read_b64_tr_b16 {v(dst,2)}, {v(vTR)} offset:{off + m*QS + t*256}"
    win = sum([wr(f) for f in [("q",0,0),("q",0,1),("q",1,1),("q",0,2),("q",1,2),("q",1,0)]], [])
    winz = [zero(QA + 2 * k) for k in range(8)]
    wint = [f"v_bfe_u32 {v(vTOUCH)}, {v(vL16)}, 4, 5", f"v_lshlrev_b32 {v(vTOUCH)}, 7, {v(vTOUCH)}"]
    pack = [trr(VB, w >> 1, w & 1, 512)] + [sw(VA + r, VA + 4 + r) for r in range(4)] + [pk(VA, VA, VA + 4), pk(VA + 2, VA + 2, VA + 6), cv(VB + 2, VA), cv(VB + 3, VA + 2)]
    KVS = 0 if cfg.get("nokv") else 128 * 4096
    kxl = [f"buffer_load_dwordx4 {v(KX+4*n,4)}, {v(vKX)}, {s(sWS,4)}, s{sKVb if n else sKV} offen sc1" for n in range(2)]
    vxl = [f"buffer_load_dwordx4 {v(VX+4*n,4)}, {v(vVX)}, {s(sWS,4)}, s{sKV} offen offset:{n*128} sc1" for n in range(2)]
    pub = lastpub = f"buffer_store_dwordx4 {v(VB,4)}, {v(vL16)}, {s(sWS,4)}, s{sKVM} offen sc1"
    if cfg.get("nopub"): pub = "s_nop 0"
    QF, KF, SXA, SMA, BX, BM, HLF, OA, LA = L2, L3, QA, QA + 4, KA, KA + 4, KA + 6, L1, L0
    def cnt(r):
        if cfg.get("meas", True): A(f"s_add_u32 s{r}, s{r}, 1")
    def delay(n):
        while n > 0: A(f"s_nop {min(n,16)-1}"); n -= 16
    spinmax = cfg.get("spin", 100000)
    A(f"s_add_u32 s{sKVb}, s{sKV}, 4096"); A(f"s_add_u32 s{sKVt}, s{sKV}, {KVS + w*4096}")
    for x in win + winz: A(x)
    A(f"s_mov_b32 s{sSPIN}, 0"); A(f"s_mov_b32 s{sTAG}, 0"); A(f"v_mov_b32 {v(vSEN)}, -1")
    A(f"v_mov_b64 {v(ONE,2)}, {s(sONE,2)}"); A(f"v_mov_b64 {v(ONE+2,2)}, {s(sONE,2)}")
    A(f"s_mov_b32 s{sLD2}, {MEM_OFF + w*2048 - X}"); A(f"s_mov_b32 m0, {X + MEMB + w*2048}")
    SL, RA = A0, A0 + 4
    sal = [f"s_add_u32 s{sSTEP}, s{sSTEP}, 1", f"s_and_b32 s{sT0}, s{sSTEP}, 3", f"s_lshl_b32 s{sT0}, s{sT0}, 13", f"s_add_u32 s{sT1}, s{sPUB}, s{sT0}",
           f"s_add_u32 s{sLD2}, s{sT0}, {MEM_OFF + w*2048 - X}", f"s_xor_b32 s{sST1}, s{sST1}, {256<<10}", f"s_xor_b32 s{sRS2}, s{sT1}, 16384"]
    tail = [f"ds_read_b128 {v(SL,4)}, {v(vL16)} offset:{SEL}"] + sal
    oth = list(win)
    for x in pack + winz: tail += [x] + oth[:1]; oth = oth[1:]
    ta, tb, tc = cfg.get("tp", [(0, 26, 0)] * 4)[w]
    assert ta + tb >= 8 and ta + tb + tc >= 26
    def need_kv(nm):
        if cfg.get("alone"): return
        A(f"s_bitcmp1_b64 {s(sKM,2)}, s{sT0}"); A(f"s_cbranch_scc0 {lab(nm)}"); A.label(lab(nm + "d"))
    A(f"s_lshl_b32 s{sKF}, s{sH}, 8"); A(f"s_add_u32 s{sKF}, s{sKF}, {KVF - (X >> 2)}")
    A(f"s_mov_b32 s{sT0}, 0"); need_kv("kv0"); A(f"s_mov_b32 s{sT0}, 1"); need_kv("kv1")
    A.wait(vm=0, lg=0)
    A.label(lab("step"))
    ST(0)
    H2 = VX
    g2 = cfg.get("g2", [[]] * 4)[w]; D2 = len(g2) + 1
    def iss2():
        A.vmq = []
        for n in range(2): A(f"buffer_load_dwordx4 {v(H2+4*n,4)}, {v(vL16)}, {s(sWS,4)}, s{sLD2} offen offset:{n*1024} sc1")
        A.vmq = []
    def use2():
        H = H2
        wrt = [f"ds_write_b128 {v(vL16)}, {v(H+4*n,4)} offset:{MEMB + (2*w+n)*1024}" for n in range(2)]
        A.wait(vm=2 * D2 - 1)
        A(f"v_max3_u32 {v(vJ0)}, {v(H)}, {v(H+1)}, {v(H+2)}"); A(f"v_max_u32 {v(vJ0)}, {v(vJ0)}, {v(H+3)}")
        if cfg.get("spec2", True): A(wrt[0])
        A.wait(vm=2 * D2 - 2)
        A(f"v_max3_u32 {v(vJ0)}, {v(vJ0)}, {v(H+4)}, {v(H+5)}"); A(f"v_max3_u32 {v(vJ0)}, {v(vJ0)}, {v(H+6)}, {v(H+7)}")
        A(f"v_cmp_eq_u32 vcc, -1, {v(vJ0)}")
        if cfg.get("spec2", True): A(wrt[1])
        return wrt
    rest = tail[ta + tb + tc:] + wint
    iss2()
    for k, g in enumerate(g2): delay(g); iss2()
    for x in rest: A(x)
    wrt = use2(); A(f"s_cbranch_vccnz {lab('r2')}"); A.label(lab("ok2")); ST(1)
    if not cfg.get("spec2", True):
        for x in wrt: A(x)
    A.wait(lg=0); A("s_barrier"); ST(2)
    ar = lambda kk: f"ds_read_b128 {v(A0+4*kk,4)}, {v(vL16)} offset:{MEMB + kk*1024}"
    A(ar(0)); A(ar(1)); A(ar(2))
    def preadd(base, t, ldsoff, tag=None):
        r = base + 4 * t
        return [sw(r, r + 2), sw(r + 1, r + 3), ad(r, r, r + 2), ad(r + 1, r + 1, r + 3), cv(r, r),
                (f"ds_write_b32 {v(vKW)}, {v(r)} offset:{ldsoff + t*256}", tag)]
    q0, q1, k0, k1 = preadd(QA, 0, 0), preadd(QA, 1, 0, "q"), preadd(KA, 0, 512), preadd(KA, 1, 512, "k")
    qr = [trr(QF + 4 * m + 2 * t, m, t, 0) for m in range(2) for t in range(2)]
    kr = [trr(KF + 4 * m + 2 * t, m, t, 512) for m in range(2) for t in range(2)]
    sx = [f"v_mfma_f32_16x16x32_bf16 {v(SXA,4)}, {v(KX+4*m,4)}, {v(QF+4*m,4)}, {v(SXA,4) if m else 0}" for m in range(2)]
    ss = [f"v_mfma_f32_16x16x32_bf16 {v(SMA,4)}, {v(KF+4*m,4)}, {v(QF+4*m,4)}, {v(SMA,4) if m else 0}" for m in range(2)]
    vs = [sm("v", t, kk) for t in range(2) for kk in range(8)]
    touch = f"buffer_load_dword {v(vTOUCH)}, {v(vTOUCH)}, {s(sWS,4)}, s{sKVt} offen sc1"
    mf = [sm("q", t, kk) for kk in range(3) for t in range(2)] + [sm("q", t, kk) for t in range(2) for kk in range(3, 8)]
    mf += [sm("k", 0, kk) for kk in (3, 4, 0, 1, 2, 5, 6, 7)] + [sm("k", 1, kk) for kk in (3, 4, 5, 0, 6, 7, 1, 2)] + sx
    slot = {}
    def at(i, x):
        while i in slot: i += 1
        slot[i] = x; return i
    for i in range(5): at(i, [ar(3 + i)])
    at(17, [q0[5]]); at(22, [q1[5]]); at(26, [bar("q"), qr[0]]); at(27, [qr[1]]); at(28, [qr[2]]); at(29, [qr[3]]); at(31, [k0[5]]); at(15, []); at(30, [pw(kxl[1])])
    vp = cfg.get("vp", [[-1, 5, 9, 13, 24, 25], [-1, 6, 10, 14, 25, 24], [-1, 7, 11, 16, 23, 25], [-1, 8, 12, 18, 25, 23]])[w]
    for x, e in zip(kxl + vxl + [touch, pub], vp):
        if e < 0: A(x)
        else: assert at(e, [x]) == e
    for f, e in ((("k",0,0), 5), (("k",0,1), 5), (("k",0,2), 5), (("k",1,0), 6), (("k",1,1), 19), (("k",1,2), 20)):
        for x in wr(f): at(e, [x])
    fill = {i: list(x) for i, x in slot.items()}
    def va(i, *x): fill[i] = fill.get(i, []) + list(x)
    va(1, pw(mf[2], mf[4]))
    for i in range(4): va(8 + i, zero(VA + 2 * i))
    for i in range(5): va(12 + i, q0[i]); va(17 + i, q1[i])
    for i, e in enumerate((25, 27, 28, 29, 30)): va(e, k0[i])
    if cfg.get("show"): print(w, {i: len(x) for i, x in sorted(fill.items())})
    assert max(fill) < len(mf)
    weave(mf, fill, "q")
    for x in k1[:5]: A(x)
    ST(3)
    def quad(r):
        return [sw(r, r + 2), sw(r + 1, r + 3), f"v_add_f32_dpp {v(r)}, {v(r+2)}, {v(r)} {ror}", f"v_add_f32_dpp {v(r+1)}, {v(r+3)}, {v(r+1)} {ror}"]
    ex = lambda r: [f"v_exp_f32 {v(r+2)}, {v(r)}", f"v_exp_f32 {v(r+3)}, {v(r+1)}"]
    xq, mq = quad(SXA), quad(SMA)
    xe = ex(SXA) + [cv(SXA + 2, SXA + 2), (f"ds_write_b32 {v(vKW)}, {v(SXA+2)} offset:{PX - QT - w*QS + w*384}", "p")]
    me = ex(SMA) + [cv(BM, SMA + 2), cv(BM + 1, SMA + 2), sw(BM, BM + 1)]
    ms = [f"v_mul_f32 {v(SMA+r)}, s{sC2}, {v(SMA+r)}" for r in range(2)]
    vc = [cv(VB + n, VA + 2 * n) for n in range(4)]
    bxr = f"ds_read_b128 {v(BX,4)}, {v(vOR)} offset:{PX}"
    mx = [f"v_mfma_f32_16x16x32_bf16 {v(d,4)}, {v(x,4)}, {v(BX,4)}, 0" for d, x in ((LA, ONE), (OA, VX), (OA + 4, VX + 4))]
    mm = [f"v_mfma_f32_16x16x16_bf16 {v(d,4)}, {v(x,2)}, {v(BM,2)}, {v(d,4)}" for d, x in ((LA, HLF), (OA, VB), (OA + 4, VB + 2))]
    z = [zero(A0 + 2 * n) for n in range(8)]
    mf = vs[0:9] + ss + vs[9:16]
    fill = {0: [k1[5], xq[0]], 1: [f"s_add_u32 s{sKV}, s{sKV}, {KVS}", f"s_add_u32 s{sKVb}, s{sKV}, 4096", xq[1]],
            2: [f"s_add_u32 s{sKVM}, s{sKVM}, {128*1024}", f"s_add_u32 s{sKVt}, s{sKVt}, {KVS}", xq[2]], 3: [f"s_add_u32 s{sST1b}, s{sST1}, 4096", xq[3]],
            4: [bar("k"), kr[0], kr[1]], 5: [kr[2], kr[3]],
            6: [xe[0]], 7: [xe[1]], 8: [xe[2]], 9: [xe[3]], 10: [vc[0], vc[1]], 11: [f"v_mov_b64 {v(HLF,2)}, {s(sHLF,2)}"],
            12: [mq[0]], 13: [bar("p"), mq[1]], 14: [bxr, mq[2]], 15: [mq[3]], 16: [ms[0]], 17: [ms[1]]}
    fill2 = {0: [me[1]], 1: [me[2], me[3]], 2: [f"s_cmp_eq_u32 s{sSTEP}, {NSEG-1}", me[4]], 3: [vc[2], vc[3]], 4: [z[0], z[1]], 5: []}
    weave(mf, fill, "v")
    A.label(lab("sm"))
    A(me[0]); A.prewait(mx[0], mx[2])
    weave(mx + mm, fill2, "pv")
    A(f"v_rcp_f32 {v(vLa)}, {v(LA)}")
    A(f"v_subrev_u32 {v(vJ0)}, s{sLO}, {v(LA)}"); A(f"v_cmp_lt_u32 vcc, s{sHI}, {v(vJ0)}")
    OF = A0 + 16
    pm = lambda r: f"v_pk_mul_f32 {v(r,2)}, {v(r,2)}, {v(vLa,2)} op_sel_hi:[1,0]"
    A(pm(OA)); A(pm(OA + 2)); A(cv(OF, OA)); A(cv(OF + 1, OA + 2))
    A(pm(OA + 4)); A(pm(OA + 6)); A(f"ds_write_b64 {v(vOW)}, {v(OF,2)}"); A(cv(OF + 2, OA + 4)); A(cv(OF + 3, OA + 6)); A(f"ds_write_b64 {v(vOW)}, {v(OF+2,2)} offset:8")
    ST("ow")
    wo = lambda i, sl: f"v_smfmac_f32_16x16x64_bf16 {v(A0+4*i,4)}, {v(OF+4*sl,4)}, {W(('o',i,sl))}, {v(vIDX)}"
    orr = [f"ds_read_b128 {v(OF+4*sl,4)}, {v(vOR)} offset:{OX + ((w+sl)&3)*1536}" for sl in range(4)]
    ow = sum([wr(f) for f in [("o",3,0),("o",3,1),("o",3,2),("o",3,3)]], [])
    H1, SL, RA = [KX, VX], A0, A0 + 4
    A(f"s_cbranch_scc1 {lab('end')}")
    for r in range(4): A(f"v_mov_b32_dpp {v(OF+r)}, {v(OF+r)} row_ror:8 row_mask:0xf bank_mask:0xc")
    A(f"s_and_b64 vcc, vcc, {s(sMSK,2)}"); A(z[2]); A(f"s_cbranch_scc1 {lab('mx')}")
    A.label(lab("mxd"))
    A(wo(0, 0)); A(z[3])
    A.wait(lg=0); A("s_barrier"); ST("obar")
    A(orr[1])
    mf = [wo(1, 0), wo(2, 0)] + [wo(i, sl) for i in range(3) for sl in range(1, 4)] + [wo(3, sl) for sl in range(4)]
    def iss1(k):
        for n in range(2): A(f"buffer_load_dwordx4 {v(H1[k]+4*n,4)}, {v(vL16)}, {s(sWS,4)}, s{sLD1} offen offset:{n*1024} sc1")
    def out(i):
        r = A0 + 4 * i
        return [cv(r, r), cv(r + 1, r + 2), f"v_and_or_b32 {v(r)}, {v(r)}, -2, s{sTAG}",
                f"buffer_store_dwordx2 {v(r,2)}, {v(vS1)}, {s(sWS,4)}, s{sST1b if i>>1 else sST1} offen offset:{(i&1)*2048} {sc}"]
    o0, o1, o2, o3 = [out(i) for i in range(4)]
    A(orr[2]); A(z[4]); A(z[5])
    fill = {0: [orr[3], z[6]], 1: [ow[0], z[7]], 2: [ow[1]], 3: [ow[2]], 4: [ow[3]], 5: [ow[4]] + o0, 6: [ow[5]], 7: [ow[6]], 8: [ow[7]], 9: o1, 12: o2}
    x1 = cfg.get("x1", [[0]] * 4)[w]; D1 = len(x1)
    if x1[0] < 0: fill[-x1[0]] = fill.get(-x1[0], []) + [lambda: ST("i1"), lambda: iss1(0)]
    weave(mf, fill, "o")
    for x in o3: A(x)
    ST(7)
    for x in tail[:ta]: A(x)
    for k, n in enumerate(x1):
        if n < 0: continue
        delay(n)
        if k == 0: ST("i1")
        iss1(k)
    for x in tail[ta:ta + tb]: A(x)
    if cfg.get("trace"):
        A.wait(lg=0)
        A(f"s_lshl_b32 s{sT0}, s{sSTEP}, 5"); A(f"s_add_u32 s{sT0}, s{sT0}, {X + 22528 + w*2048}"); A(f"v_mov_b32 {v(vJ0)}, s{sT0}")
        for n in range(0, 8, 2):
            A(f"v_mov_b32 {v(vLa)}, s{70+2*n}"); A(f"v_mov_b32 {v(vLb)}, s{72+2*n}"); A(f"ds_write_b64 {v(vJ0)}, {v(vLa,2)} offset:{4*n}")
    A.prewait(f"v_mov_b64 {v(SL,2)}, {v(SL,2)}")
    def use1(k):
        H = H1[k]
        A(f"v_mfma_f32_16x16x32_bf16 {v(RA,4)}, {v(SL,4)}, {v(H,4)}, 0")
        A(f"v_bitop3_b32 {v(vJ0)}, {v(H)}, {v(H+2)}, s{sTAG} bitop3:0x7e")
        A(f"v_mfma_f32_16x16x32_bf16 {v(RA,4)}, {v(SL,4)}, {v(H+4,4)}, {v(RA,4)}")
        A(f"v_bitop3_b32 {v(vLb)}, {v(H+4)}, {v(H+6)}, s{sTAG} bitop3:0x7e")
        A(f"v_bitop3_b32 {v(vJ0)}, {v(vJ0)}, {v(vLb)}, 1 bitop3:0xa8")
        A(f"v_cmp_ne_u32 vcc, 0, {v(vJ0)}")
    red = lambda rr: [f"v_add_f32_dpp {v(RA+r)}, {v(RA+r)}, {v(RA+r)} row_ror:{rr} row_mask:0xf bank_mask:0xf" for r in range(2)]
    use1(0)
    for x in red(4): A(x)
    A(f"s_cbranch_vccnz {lab('r1')}"); A.label(lab("ok1")); ST("ok1")
    for x in red(8): A(x)
    A(cv(vLa, RA))
    A(f"buffer_store_dword {v(vLa)}, {v(vPUB)}, {s(sWS,4)}, s{sT1} offen {sc}")
    ST(8)
    A(f"buffer_store_dword {v(vSEN)}, {v(vPUB)}, {s(sWS,4)}, s{sRS2} offen {sc}")
    for x in tail[ta + tb:ta + tb + tc]: A(x)
    A(f"s_xor_b32 s{sLD1}, s{sLD1}, {256<<10}"); A(f"s_bfe_u32 s{sTAG}, s{sSTEP}, 0x10001")
    if stamp and not cfg.get("trace"):
        A.wait(lg=0)
        A(f"s_cmp_lt_u32 s{sSTEP}, 4"); A(f"s_cbranch_scc1 {lab('ns')}")
        for n in range(len(stamp)-1): A(f"s_sub_u32 s{sT0}, s{72+2*n}, s{70+2*n}"); A(f"s_add_u32 s{90+n}, s{90+n}, s{sT0}")
        A(f"s_sub_u32 s{sT0}, s70, s63"); A(f"s_add_u32 s98, s98, s{sT0}")
        A.label(lab("ns")); A("s_mov_b32 s63, s70")
    A(f"s_add_u32 s{sT0}, s{sSTEP}, 1"); need_kv("kv2")
    if cfg.get("meas", True):
        A(f"s_cmp_eq_u32 s{sSTEP}, 8"); A(f"s_cbranch_scc1 {lab('m8')}"); A.label(lab("m8d"))
    delay(cfg.get("d2", [0] * 4)[w])
    A(f"s_branch {lab('step')}")
    if cfg.get("meas", True):
        A.forget(); A.label(lab("m8")); A("s_memtime s[64:65]", tag="stamp"); A("s_memrealtime s[60:61]", tag="stamp"); A("s_mov_b32 s99, 0"); A("s_mov_b32 s101, 0"); A("s_mov_b32 s100, 0"); A(f"s_branch {lab('m8d')}")
    for nm in ([] if cfg.get("alone") else ["kv0", "kv1", "kv2"]):
        A.forget(); A.label(lab(nm))
        A(f"v_lshrrev_b32 {v(vJ0)}, 2, {v(vL16)}"); A(f"buffer_load_dword {v(vJ0)}, {v(vJ0)}, {s(sWS,4)}, s{sKF} offen sc1")
        A(f"v_cmp_eq_u32 {s(sKM,2)}, 1, {v(vJ0)}"); A("s_nop 4")
        A(f"s_bitcmp1_b64 {s(sKM,2)}, s{sT0}"); A(f"s_cbranch_scc1 {lab(nm + 'd')}")
        A(f"s_add_u32 s{sSPIN}, s{sSPIN}, 1"); A(f"s_cmp_lt_u32 s{sSPIN}, {spinmax}"); A(f"s_cbranch_scc1 {lab(nm)}"); A(f"s_branch {lab(nm + 'd')}")
    A.forget(); A.label(lab("r2"))
    for k in range(2):
        iss2(); cnt(99); use2(); A(f"s_cbranch_vccz {lab('ok2')}")
    A(f"s_add_u32 s{sSPIN}, s{sSPIN}, 1"); A(f"s_cmp_lt_u32 s{sSPIN}, {spinmax}"); A(f"s_cbranch_scc1 {lab('r2')}")
    A(f"s_mov_b32 s{sGIVE}, 1"); A(f"s_branch {lab('ok2')}")
    A.forget(); A.label(lab("r1"))
    A.vmq = [({("v", H1[k] + 4 * n + r) for r in range(4)}, None, False) for k in range(1, D1) for n in range(2)]
    for k in range(D1):
        cnt(100); iss1(k); use1((k + 1) % D1); A(red(4)[0]); A(red(4)[1]); A(f"s_cbranch_vccz {lab('ok1')}")
    A(f"s_add_u32 s{sSPIN}, s{sSPIN}, 1"); A(f"s_cmp_lt_u32 s{sSPIN}, {spinmax}"); A(f"s_cbranch_scc1 {lab('r1')}")
    A(f"s_mov_b32 s{sGIVE}, 1"); A.wait(vm=0); A(f"s_branch {lab('ok1')}")
    A.forget(); A.label(lab("mx"))
    A("s_nop 7")
    A(f"v_max3_f32 {v(vLa)}, {v(SXA)}, {v(SXA+1)}, {v(SMA)}"); A(f"v_max_f32 {v(vLa)}, {v(vLa)}, {v(SMA+1)}"); A(f"v_mov_b32 {v(vLb)}, {v(vLa)}")
    A(f"v_permlane16_swap_b32 {v(vLa)}, {v(vLb)}"); A(f"v_max_f32 {v(vLa)}, {v(vLa)}, {v(vLb)}"); A(f"v_mov_b32 {v(vLb)}, {v(vLa)}")
    A(f"v_permlane32_swap_b32 {v(vLa)}, {v(vLb)}"); A(f"v_max_f32 {v(vLa)}, {v(vLa)}, {v(vLb)}")
    A(f"ds_write_b32 {v(vL16)}, {v(vLa)} offset:{MXB + 4*w}"); A.wait(lg=0); A("s_barrier")
    A(f"ds_read_b128 {v(LA,4)}, {v(vL16)} offset:{MXB}")
    A(f"v_max3_f32 {v(vLa)}, {v(LA)}, {v(LA+1)}, {v(LA+2)}"); A(f"v_max_f32 {v(vLa)}, {v(vLa)}, {v(LA+3)}")
    A(f"v_cmp_neq_f32 vcc, 0, {v(vLa)}")
    A(f"v_mov_b32 {v(vJ0)}, 0x1f8")
    A(f"v_cmp_class_f32 s[36:37], {v(vLa)}, {v(vJ0)}")
    A("s_nop 4"); A("s_and_b64 vcc, vcc, s[36:37]"); A(f"s_and_b64 vcc, vcc, {s(sMSK,2)}")
    A(f"s_cbranch_scc0 {lab('mxd')}")
    A(f"v_cndmask_b32 {v(vLa)}, 0, {v(vLa)}, vcc")
    for r in (SXA, SXA + 1, SMA, SMA + 1): A(f"v_sub_f32 {v(r)}, {v(r)}, {v(vLa)}")
    for x in xe: put(x)
    A.wait(lg=0); A("s_barrier"); A(bxr); A.wait(lg=0)
    A(f"s_cmp_eq_u32 s{sSTEP}, {NSEG-1}")
    A(f"s_branch {lab('sm')}")
    A.forget(); A.label(lab("end"))
    for x in pack + [lastpub]: A(x)

def arrive(A, w):
    if w == 0:
        A("s_getreg_b32 s36, hwreg(HW_REG_XCC_ID, 0, 3)"); A("s_lshl_b32 s36, s36, 3"); A("s_lshl_b64 s[36:37], 1, s36")
        A("v_mov_b32 v116, s36"); A("v_mov_b32 v117, s37"); A("v_mov_b32 v118, 0")
        A("s_mov_b64 exec, 1"); A("global_atomic_add_x2 v118, v[116:117], s[6:7]"); A("s_mov_b64 exec, -1")

def meet(A, w, cfg):
    sm = cfg.get("spin", 100000)
    A(f"s_mov_b32 s{sSPIN}, 0"); A("v_mov_b32 v118, 0"); A(f"s_mov_b64 {s(sKM,2)}, 0")
    A("s_getreg_b32 s36, hwreg(HW_REG_XCC_ID, 0, 3)"); A("s_lshl_b32 s36, s36, 3"); A("s_lshl_b64 s[36:37], 32, s36")
    if not cfg.get("alone"):
        A("v_and_b32 v114, v114, v115"); A("v_cmp_ne_u32 vcc, -1, v114"); A(f"s_cbranch_vccnz Tln_{w}")
        A(f"v_cmp_eq_u32 {s(sKM,2)}, 1, {v(vJ0)}"); A(f"s_branch Tmeet2_{w}")
        A.label(f"Tln_{w}")
        A("global_load_dwordx2 v[116:117], v118, s[6:7] offset:128 sc1"); A("v_and_b32 v116, v116, v117"); A("v_cmp_ne_u32 vcc, -1, v116"); A(f"s_cbranch_vccz Tmeet_{w}")
        A(f"s_add_u32 s{sSPIN}, s{sSPIN}, 1"); A(f"s_cmp_lt_u32 s{sSPIN}, {sm}"); A(f"s_cbranch_scc1 Tln_{w}")
    A.label(f"Tmeet_{w}")
    A("global_load_dwordx2 v[116:117], v118, s[6:7] sc1")
    A.label(f"Tmeet2_{w}")
    A("v_sad_u8 v119, v116, 0, 0"); A("v_sad_u8 v119, v117, 0, v119")
    A("v_readfirstlane_b32 s38, v116"); A("v_readfirstlane_b32 s39, v117"); A("v_readfirstlane_b32 s40, v119")
    A("s_nop 3")
    if not cfg.get("force_slow"):
        A("s_cmp_eq_u64 s[36:37], s[38:39]"); A(f"s_cbranch_scc1 Tfast_{w}")
    A("s_cmp_eq_u32 s40, 32"); A(f"s_cbranch_scc1 Tslow_{w}")
    A(f"s_add_u32 s{sSPIN}, s{sSPIN}, 1"); A(f"s_cmp_lt_u32 s{sSPIN}, {sm}"); A(f"s_cbranch_scc1 Tmeet_{w}")
    A(f"s_branch Tslow_{w}")

def team(A, cfg, fin):
    global ORDER
    ORDER = cfg.get("order", "qkvo")
    cfg = dict(cfg); cfg["arrive"] = arrive
    for w in range(1, 4):
        A(f"s_cmp_eq_u32 s17, {w}"); A(f"s_cbranch_scc1 Twave_{w}")
    for w in range(4):
        A.forget(); A.label(f"Twave_{w}")
        prologue(A, w, cfg); meet(A, w, cfg)
        for sc, nm in (("", "fast"), ("sc1", "slow")):
            A.forget(); A.label(f"T{nm}_{w}")
            if cfg.get("meas", True): A("s_memrealtime s[66:67]", tag="stamp")
            loop(A, w, cfg, sc); fin(A, w)
```

```python
from gen import *
import struct
from team import KV_OFF, KVM_OFF, CSC, X

XN_OFF, Y_OFF, FLG_OFF, PART_OFF = 52 << 20, 54 << 20, 56 << 20, 64 << 20
KVF, MF, AF = FLG_OFF, FLG_OFF + 8192, FLG_OFF + 16384
CHUNK = 48 * 1024; SEGP = 32 * CHUNK
EXC, KVL = 65536, 73728
OOB = 0x40000000
fb = lambda x: "0x%08x" % struct.unpack("<I", struct.pack("<f", x))[0]
LOG2E = 1.4426950408889634

sWS = 8
sU, sWV, sH, sT, sSEG, sSPIN, sA, sB, sC, sM0, sBUF, sPREV, sSRC, sEND, sD, sE = range(16, 32)
sW1, sW2, sXR, sOUT = 32, 36, 40, 44
sLN = 48
vL, vL16, vST, vTRA, vS1, vS2, vKA, vRD, vXO, vZ, vT0, vT1, vT2, vT3, vKM, vVM = range(0, 16)
AC1, AC2, BR, KF, VF, MSK, SMA, KM, G2, MS = 16, 32, 48, 80, 112, 120, 136, 152, 184, 216
SEL, GA, RA, XV, VM, PM, B2 = 216, 220, 224, 228, 232, 236, 230

def bits(A, dst, terms, const=0):
    A(f"v_mov_b32 {v(dst)}, {const}")
    for (b, n, sh) in terms:
        A(f"v_bfe_u32 {v(vT0)}, {v(vL)}, {b}, {n}"); A(f"v_lshl_add_u32 {v(dst)}, {v(vT0)}, {sh}, {v(dst)}")

def srd(A, r, arg, nbytes):
    A(f"s_load_dwordx2 {s(r,2)}, s[0:1], {arg}"); A(f"s_mov_b32 s{r+2}, {nbytes}"); A(f"s_mov_b32 s{r+3}, 0x20000")

def spin(A, again, cfg):
    A(f"s_add_u32 s{sSPIN}, s{sSPIN}, 1"); A(f"s_cmp_lt_u32 s{sSPIN}, {cfg.get('spin', 100000)}"); A(f"s_cbranch_scc1 {again}")

def layer_norm(A, cfg):
    R, F = 16, 64
    bits(A, vT2, [(0, 3, 10), (3, 3, 4)]); bits(A, vT3, [(0, 3, 4), (3, 3, 9)])
    A(f"s_lshl_b32 s{sA}, s{sSEG}, 15"); A(f"s_lshl_b32 s{sB}, s{sWV}, 13"); A(f"s_add_u32 s{sB}, s{sA}, s{sB}")
    for i in range(8): A(f"buffer_load_dwordx4 {v(R+4*i,4)}, {v(vT2)}, {s(sXR,4)}, s{sB} offen offset:{i*128}")
    A(f"s_lshl_b32 s{sB}, s{sWV}, 7"); A(f"s_add_u32 s{sB}, s{sA}, s{sB}")
    A(f"v_and_b32 {v(vT0)}, 31, {v(vL)}"); A(f"v_lshlrev_b32 {v(vT1)}, 8, {v(vT0)}"); A(f"v_lshlrev_b32 {v(vT0)}, 2, {v(vT0)}")
    A(f"s_lshl_b32 s{sC}, s{sSEG}, 2"); A(f"s_add_u32 s{sC}, s{sC}, {KVF}"); A(f"buffer_store_dword {v(vZ)}, {v(vT1)}, {s(sWS,4)}, s{sC} offen sc1")
    A(f"s_lshl_b32 s{sC}, s{sSEG}, 7"); A(f"s_add_u32 s{sC}, s{sC}, {MF}"); A(f"buffer_store_dword {v(vZ)}, {v(vT0)}, {s(sWS,4)}, s{sC} offen sc1")
    A(f"s_add_u32 s{sC}, s{sC}, {AF - MF}"); A(f"buffer_store_dword {v(vZ)}, {v(vT0)}, {s(sWS,4)}, s{sC} offen sc1")
    P, Q = 130, 132
    def allred():
        A(f"v_add_f32 {v(P)}, {v(P)}, {v(P+1)}")
        A(f"v_add_f32_dpp {v(P)}, {v(P)}, {v(P)} row_ror:8 row_mask:0xf bank_mask:0xf")
        for op in ("16", "32"):
            A(f"v_mov_b32 {v(P+1)}, {v(P)}"); A(f"v_permlane{op}_swap_b32 {v(P)}, {v(P+1)}"); A(f"v_add_f32 {v(P)}, {v(P)}, {v(P+1)}")
    for dst in (XN_OFF, Y_OFF):
        for i in range(32):
            A(f"v_lshlrev_b32 {v(F+2*i)}, 16, {v(R+i)}"); A(f"v_and_b32 {v(F+2*i+1)}, 0xffff0000, {v(R+i)}")
        A(f"v_pk_add_f32 {v(P,2)}, {v(F,2)}, {v(F+2,2)}")
        for i in range(2, 32): A(f"v_pk_add_f32 {v(P,2)}, {v(P,2)}, {v(F+2*i,2)}")
        allred(); A(f"v_mul_f32 {v(Q)}, {fb(-1/512)}, {v(P)}")
        for i in range(32): A(f"v_pk_add_f32 {v(F+2*i,2)}, {v(F+2*i,2)}, {v(Q,2)} op_sel_hi:[1,0]")
        A(f"v_pk_mul_f32 {v(P,2)}, {v(F,2)}, {v(F,2)}")
        for i in range(1, 32): A(f"v_pk_fma_f32 {v(P,2)}, {v(F+2*i,2)}, {v(F+2*i,2)}, {v(P,2)}")
        allred(); A(f"v_mov_b32 {v(Q)}, {fb(1e-5)}"); A(f"v_fmac_f32 {v(Q)}, {fb(1/512)}, {v(P)}"); A(f"v_rsq_f32 {v(Q)}, {v(Q)}")
        A(f"s_add_u32 s{sC}, s{sB}, {dst}")
        for i in range(32):
            A(f"v_pk_mul_f32 {v(F+2*i,2)}, {v(F+2*i,2)}, {v(Q,2)} op_sel_hi:[1,0]"); A(f"v_cvt_pk_bf16_f32 {v(R+i)}, {v(F+2*i)}, {v(F+2*i+1)}")
            if i % 4 == 3:
                A(f"buffer_store_dwordx4 {v(R+i-3,4)}, {v(vT3)}, {s(sWS,4)}, s{sC} offen sc1"); A(f"s_add_u32 s{sC}, s{sC}, 4096")
    A.wait(vm=0); A("s_barrier")
    A(f"s_lshl_b64 {s(sD,2)}, 1, s{sSEG}"); A(f"v_mov_b32 {v(R)}, s{sD}"); A(f"v_mov_b32 {v(R+1)}, s{sE}")
    A(f"s_cmp_lg_u32 s{sWV}, 0"); A("s_cbranch_scc1 Wln_done")
    A("s_mov_b64 exec, 1"); A(f"global_atomic_or_x2 {v(vZ)}, {v(R,2)}, s[6:7] offset:128"); A("s_mov_b64 exec, -1")

def load_weights(A, kinds):
    units = []
    for half, kd in enumerate(kinds):
        for un in range(8): units.append((half, kd, un))
    def dma(i):
        half, kd, un = units[i]
        for n in range(4):
            so = (64 * un + 16 * n) * kd[3] if kd[0] == "n" else (64 * (un & 1) + 16 * n) * 1024 + 64 * (un >> 1)
            A(f"s_add_u32 m0, s{sM0}, {(i % 8)*4096 + n*1024}"); A(f"s_add_u32 s{sA}, s{kd[2]}, {so}")
            A(f"buffer_load_dwordx4 {v(vS1 if kd[0] == 'n' else vS2)}, {s(kd[1],4)}, s{sA} offen lds", tag=("u", i))
    A("s_barrier")
    for i in range(8): dma(i)
    for i in range(16):
        half, kd, un = units[i]
        A.wait_tag(("u", i))
        for n in range(4):
            for p in range(2):
                A(f"ds_read_b64_tr_b16 {a(128*half + 16*un + 4*n + 2*p, 2)}, {v(vTRA)} offset:{(i % 8)*4096 + n*1024 + p*256}")
        A.wait(lg=0)
        if i < 8: dma(i + 8)
    A("s_barrier")

def need_ln(A, cfg, nm, sseg):
    A(f"s_bitcmp1_b64 {s(sLN,2)}, s{sseg}"); A(f"s_cbranch_scc1 {nm}_ok")
    A.label(f"{nm}_poll")
    A(f"global_load_dwordx2 {v(vT0,2)}, {v(vZ)}, s[6:7] offset:128 sc1")
    A(f"v_readfirstlane_b32 s{sLN}, {v(vT0)}"); A(f"v_readfirstlane_b32 s{sLN+1}, {v(vT1)}"); A("s_nop 3")
    A(f"s_bitcmp1_b64 {s(sLN,2)}, s{sseg}"); A(f"s_cbranch_scc1 {nm}_ok")
    spin(A, f"{nm}_poll", cfg)
    A.label(f"{nm}_ok")

def act_dma(A, off, sseg, sbuf):
    A(f"s_lshl_b32 s{sA}, s{sseg}, 15"); A(f"s_lshl_b32 s{sB}, s{sWV}, 13"); A(f"s_add_u32 s{sA}, s{sA}, s{sB}"); A(f"s_add_u32 s{sA}, s{sA}, {off}")
    A(f"s_add_u32 s{sB}, s{sB}, s{sbuf}")
    for hf in range(2):
        A(f"s_add_u32 m0, s{sB}, {hf*4096}"); A(f"s_add_u32 s{sC}, s{sA}, {hf*4096}")
        for n in range(4): A(f"buffer_load_dwordx4 {v(vL16)}, {s(sWS,4)}, s{sC} offen offset:{n*1024} sc1 lds", tag="act")

def gemm1(A, two, c0="0"):
    A(f"v_add_u32 {v(vT2)}, s{sBUF}, {v(vL16)}")
    rd = lambda k: f"ds_read_b128 {v(BR+4*(k % 8),4)}, {v(vT2)} offset:{k*1024}"
    for k in range(6): A(rd(k))
    for k in range(32):
        b = v(BR + 4 * (k % 8), 4)
        A(f"v_mfma_f32_32x32x16_bf16 {v(AC1,16)}, {a(4*k,4)}, {b}, {v(AC1,16) if k else c0}")
        if k + 6 < 32: A(rd(k + 6))
        if two: A(f"v_mfma_f32_32x32x16_bf16 {v(AC2,16)}, {b}, {a(128+4*k,4)}, {v(AC2,16) if k else 0}")

def pack(A, dst, src):
    for i in range(8): A(f"v_cvt_pk_bf16_f32 {v(dst+i)}, {v(src+2*i)}, {v(src+2*i+1)}")

def exchange(A, src):
    A(f"s_lshl_b32 s{sA}, s{sWV}, 11"); A(f"v_add_u32 {v(vT2)}, s{sA}, {v(vRD)}")
    for ap in range(2): A(f"ds_write_b128 {v(vT2)}, {v(src+4*ap,4)} offset:{ap*1024}")
    A.wait(lg=0); A("s_barrier")
    for k in range(8): A(f"ds_read_b128 {v(BR+4*k,4)}, {v(vRD)} offset:{k*1024}")

def gemm2(A):
    A(f"s_mul_i32 s{sA}, s{sSEG}, {SEGP}"); A(f"s_mul_i32 s{sB}, s{sWV}, {8*CHUNK}"); A(f"s_add_u32 s{sA}, s{sA}, s{sB}")
    A(f"s_lshl_b32 s{sB}, s{sSRC}, 10"); A(f"s_add_u32 s{sA}, s{sA}, s{sB}"); A(f"s_add_u32 s{sA}, s{sA}, {PART_OFF}")
    def out(ct):
        r = G2 + 16 * (ct & 1); o = []
        for ap in range(2):
            o += [f"v_cvt_pk_bf16_f32 {v(r+8*ap+i)}, {v(r+8*ap+2*i)}, {v(r+8*ap+2*i+1)}" for i in range(4)]
            o += [f"buffer_store_dwordx4 {v(r+8*ap,4)}, {v(vST)}, {s(sWS,4)}, s{sA} offen offset:{(2*ct+ap)*128} sc1"]
        return o
    for ct in range(4):
        r = v(G2 + 16 * (ct & 1), 16); pend = out(ct - 1) if ct else []
        for k in range(8):
            A(f"v_mfma_f32_32x32x16_bf16 {r}, {a(128+32*ct+4*k,4)}, {v(BR+4*k,4)}, {r if k else 0}")
            if k in (2, 4):
                for x in pend[:5]: A(x)
                pend = pend[5:]
    for x in out(3): A(x)

def flag(A, nm, base, shift_seg, sidx, sh):
    A(f"s_cmp_lg_u32 s{sWV}, 0"); A(f"s_cbranch_scc1 {nm}")
    A(f"s_lshl_b32 s{sA}, s{sPREV}, {shift_seg}"); A(f"s_lshl_b32 s{sB}, s{sidx}, {sh}"); A(f"s_add_u32 s{sA}, s{sA}, s{sB}"); A(f"s_add_u32 s{sA}, s{sA}, {base}")
    A(f"v_mov_b32 {v(vT0)}, 1"); A("s_mov_b64 exec, 1"); A(f"buffer_store_dword {v(vT0)}, off, {s(sWS,4)}, s{sA} sc1"); A("s_mov_b64 exec, -1")
    A.label(nm)

def wait_flags(A, cfg, nm, base, n):
    A(f"s_lshl_b32 s{sA}, s{sSEG}, 7"); A(f"s_add_u32 s{sA}, s{sA}, {base}")
    A(f"v_min_u32 {v(vT1)}, {n-1}, {v(vL)}"); A(f"v_lshlrev_b32 {v(vT1)}, 2, {v(vT1)}")
    A.label(nm)
    A(f"buffer_load_dword {v(vT0)}, {v(vT1)}, {s(sWS,4)}, s{sA} offen sc1")
    A(f"v_cmp_ne_u32 vcc, 1, {v(vT0)}"); A(f"s_cbranch_vccz {nm}_ok")
    spin(A, nm, cfg)
    A.label(f"{nm}_ok")

def seg_loop(A, cfg, nm, off, step, body, fl):
    A(f"s_mov_b32 s{sBUF}, 0"); need_ln(A, cfg, nm + "_l0", sSEG); act_dma(A, off, sSEG, sBUF)
    A.wait(vm=0); A("s_barrier")
    A.label(nm + "_top")
    A(f"s_add_u32 s{sD}, s{sSEG}, {step}"); A(f"s_cmp_ge_u32 s{sD}, s{sEND}"); A(f"s_cbranch_scc1 {nm}_nn")
    need_ln(A, cfg, nm + "_l1", sD); A(f"s_xor_b32 s{sE}, s{sBUF}, 32768"); act_dma(A, off, sD, sE)
    A.label(nm + "_nn"); A.vmq = []
    body()
    A(f"s_mov_b32 s{sPREV}, s{sSEG}")
    A.wait(vm=0); A("s_barrier")
    fl()
    A(f"s_xor_b32 s{sBUF}, s{sBUF}, 32768"); A(f"s_add_u32 s{sSEG}, s{sSEG}, {step}"); A(f"s_cmp_lt_u32 s{sSEG}, s{sEND}"); A(f"s_cbranch_scc1 {nm}_top")

def worker(A, cfg):
    def TS(n):
        if cfg.get("wstamp"): A(f"s_memrealtime s[{70+2*n}:{71+2*n}]", tag="stamp")
    srd(A, sXR, 0, 2097152); srd(A, sOUT, 96, 2097152); srd(A, sW1, 24, 4194304); srd(A, sW2, 32, 4194304)
    A("s_load_dwordx2 s[52:53], s[0:1], 16"); A("s_load_dwordx2 s[54:55], s[0:1], 40")
    A(f"v_and_b32 {v(vL)}, 63, v0"); A(f"v_mov_b32 {v(vZ)}, 0"); A(f"v_lshlrev_b32 {v(vL16)}, 4, {v(vL)}")
    A(f"s_mov_b32 s{sSPIN}, 0"); A(f"s_mov_b64 {s(sLN,2)}, 0"); A(f"s_lshl_b32 s{sM0}, s{sWV}, 15")
    A(f"s_mul_i32 s{sH}, s{sU}, 9363"); A(f"s_lshr_b32 s{sH}, s{sH}, 16"); A(f"s_mul_i32 s{sT}, s{sH}, 7"); A(f"s_sub_u32 s{sT}, s{sU}, s{sT}")
    A.wait(lg=0)
    A(f"s_cmp_ge_u32 s{sT}, 5"); A("s_cbranch_scc1 Wln")
    if cfg.get("wtouch", True):
        A(f"s_cmp_eq_u32 s{sT}, 0"); A("s_cbranch_scc1 Wln_done")
        A(f"s_sub_u32 s{sA}, s{sT}, 1"); A(f"s_lshl_b32 s{sA}, s{sA}, 2"); A(f"s_add_u32 s{sA}, s{sA}, s{sWV}")
        bits(A, vT2, [(1, 5, 13), (0, 1, 7)]); A(f"s_lshl_b32 s{sB}, s{sA}, 18"); A(f"s_lshl_b32 s{sC}, s{sH}, 8"); A(f"s_add_u32 s{sB}, s{sB}, s{sC}"); A(f"v_add_u32 {v(vT2)}, s{sB}, {v(vT2)}")
        A(f"s_lshl_b32 s{sB}, s{sA}, 13"); A(f"s_lshl_b32 s{sC}, s{sH}, 17"); A(f"s_add_u32 s{sB}, s{sB}, s{sC}"); A(f"v_lshl_add_u32 {v(vT3)}, {v(vL)}, 7, s{sB}")
        for k, m in enumerate(cfg.get("torder", "qkvo")): A(f"global_load_dword {v(240+k)}, {v(vT3 if m == 'o' else vT2)}, {s(dict(q=52, k=sW1, v=sW2, o=54)[m],2)}")
    A("s_branch Wln_done")
    A.forget(); A.label("Wln")
    A(f"s_lshl_b32 s{sSEG}, s{sH}, 1"); A(f"s_add_u32 s{sSEG}, s{sSEG}, s{sT}"); A(f"s_sub_u32 s{sSEG}, s{sSEG}, 5")
    layer_norm(A, cfg)
    A.label("Wln_done"); A.vmq = []
    TS(0)
    bits(A, vS1, [(2, 4, 13), (0, 2, 4)])
    bits(A, vS2, [(2, 2, 10), (4, 1, 13), (5, 1, 12), (0, 2, 4)])
    bits(A, vTRA, [(5, 1, 9), (2, 2, 6), (4, 1, 5), (0, 2, 3)]); A(f"v_add_u32 {v(vTRA)}, s{sM0}, {v(vTRA)}")
    bits(A, vKA, [(5, 1, 9), (4, 1, 8), (3, 1, 6), (2, 1, 7), (0, 2, 4)])
    bits(A, vST, [(2, 3, 15), (2, 3, 14), (5, 1, 6), (0, 2, 4)])
    A(f"v_add_u32 {v(vRD)}, {EXC}, {v(vL16)}")
    for r in range(4): A(f"v_mov_b32 {v(MSK+r)}, -1")
    A(f"s_lshl_b32 s{sD}, s{sH}, 8"); A(f"s_lshl_b32 s{sA}, s{sWV}, 6"); A(f"s_add_u32 s{sD}, s{sD}, s{sA}")
    load_weights(A, [("n", sW1, sD, 8192), ("n", sW2, sD, 8192)])
    TS(1)
    def kv_body():
        A(f"s_lshl_b32 s{sA}, s{sSEG}, 17"); A(f"s_lshl_b32 s{sB}, s{sH}, 12"); A(f"s_add_u32 s{sA}, s{sA}, s{sB}")
        A(f"s_lshl_b32 s{sB}, s{sWV}, 10"); A(f"s_add_u32 s{sA}, s{sA}, s{sB}"); A(f"s_add_u32 s{sA}, s{sA}, {KVM_OFF + (1 << 17)}")
        A(f"buffer_store_dwordx4 {v(MSK,4)}, {v(vL16)}, {s(sWS,4)}, s{sA} offen sc1")
        gemm1(A, True)
        A(f"s_lshl_b32 s{sA}, s{sSEG}, 19"); A(f"s_lshl_b32 s{sB}, s{sH}, 14"); A(f"s_add_u32 s{sA}, s{sA}, s{sB}")
        A(f"s_lshl_b32 s{sB}, s{sWV}, 12"); A(f"s_add_u32 s{sA}, s{sA}, s{sB}")
        for i in range(16): A(f"v_mul_f32 {v(AC1+i)}, {fb(CSC)}, {v(AC1+i)}")
        pack(A, AC1, AC1)
        for ap in range(2): A(f"buffer_store_dwordx4 {v(AC1+4*ap,4)}, {v(vKA)}, {s(sWS,4)}, s{sA} offen offset:{ap*1024} sc1")
        pack(A, AC2, AC2)
        for ap in range(2): A(f"buffer_store_dwordx4 {v(AC2+4*ap,4)}, {v(vL16)}, {s(sWS,4)}, s{sA} offen offset:{2048 + ap*1024} sc1")
    A(f"s_mov_b32 s{sSEG}, s{sT}"); A(f"s_mov_b32 s{sEND}, 64")
    seg_loop(A, cfg, "Wkv", XN_OFF, 7, kv_body, lambda: flag(A, "Wkv_f", KVF, 2, sH, 8))
    TS(2)
    srd(A, sW1, 64, 512 * 1792 * 2); srd(A, sW2, 80, 1792 * 512 * 2); A(f"s_load_dwordx2 s[4:5], s[0:1], 72")
    A(f"s_lshr_b32 s{sSRC}, s{sU}, 4")
    A(f"v_lshrrev_b32 {v(vT0)}, 2, {v(vL)}"); A(f"v_mul_u32_u24 {v(vS1)}, 3584, {v(vT0)}"); A(f"v_and_b32 {v(vT0)}, 3, {v(vL)}"); A(f"v_lshl_add_u32 {v(vS1)}, {v(vT0)}, 4, {v(vS1)}")
    A(f"s_lshl_b32 s{sD}, s{sSRC}, 8"); A(f"s_lshl_b32 s{sA}, s{sWV}, 6"); A(f"s_add_u32 s{sD}, s{sD}, s{sA}")
    A(f"s_lshl_b32 s{sE}, s{sSRC}, 17"); A(f"s_lshl_b32 s{sA}, s{sWV}, 8"); A(f"s_add_u32 s{sE}, s{sE}, s{sA}")
    A(f"v_lshrrev_b32 {v(vT0)}, 5, {v(vL)}"); A(f"v_lshl_add_u32 {v(vT0)}, {v(vT0)}, 3, s{sD}")
    A.wait(lg=0)
    for q in range(4): A(f"global_load_dwordx2 {v(AC1+2*q,2)}, {v(vT0)}, s[4:5] offset:{16*q}")
    for i in range(8): A(f"v_lshlrev_b32 {v(MSK+2*i)}, 16, {v(AC1+i)}"); A(f"v_and_b32 {v(MSK+2*i+1)}, 0xffff0000, {v(AC1+i)}")
    load_weights(A, [("n", sW1, sD, 3584), ("k", sW2, sE)])
    TS(3)
    def mlp_body():
        gemm1(A, False, v(MSK, 16))
        k0, k1 = -2 * LOG2E * 0.7978845608028654, -2 * LOG2E * 0.7978845608028654 * 0.044715
        A(f"s_mov_b32 s{sA}, {fb(k0)}")
        for i in range(16): A(f"v_mul_f32 {v(AC2+i)}, {v(AC1+i)}, {v(AC1+i)}")
        for i in range(16): A(f"v_mul_f32 {v(AC2+i)}, {fb(k1)}, {v(AC2+i)}")
        for i in range(16): A(f"v_add_f32 {v(AC2+i)}, s{sA}, {v(AC2+i)}")
        for i in range(16): A(f"v_mul_f32 {v(AC2+i)}, {v(AC2+i)}, {v(AC1+i)}")
        for i in range(16): A(f"v_exp_f32 {v(AC2+i)}, {v(AC2+i)}")
        for i in range(16): A(f"v_add_f32 {v(AC2+i)}, 1.0, {v(AC2+i)}")
        for i in range(16): A(f"v_rcp_f32 {v(AC2+i)}, {v(AC2+i)}")
        for i in range(16): A(f"v_mul_f32 {v(AC1+i)}, {v(AC1+i)}, {v(AC2+i)}")
        pack(A, AC1, AC1); exchange(A, AC1); gemm2(A)
    A(f"s_and_b32 s{sSEG}, s{sU}, 15"); A(f"s_lshl_b32 s{sSEG}, s{sSEG}, 2"); A(f"s_add_u32 s{sEND}, s{sSEG}, 4"); A(f"s_add_u32 s{sSRC}, s{sSRC}, 32")
    seg_loop(A, cfg, "Wml", Y_OFF, 1, mlp_body, lambda: flag(A, "Wml_f", MF - 128, 7, sSRC, 2))
    TS(4)
    srd(A, sW1, 16, 4194304); srd(A, sW2, 40, 4194304); A(f"s_load_dwordx2 s[4:5], s[0:1], 88")
    bits(A, vS1, [(2, 4, 13), (0, 2, 4)])
    A(f"s_lshl_b32 s{sD}, s{sH}, 8"); A(f"s_lshl_b32 s{sA}, s{sWV}, 6"); A(f"s_add_u32 s{sD}, s{sD}, s{sA}")
    A(f"s_lshl_b32 s{sE}, s{sH}, 17"); A(f"s_lshl_b32 s{sA}, s{sWV}, 8"); A(f"s_add_u32 s{sE}, s{sE}, s{sA}")
    A(f"v_and_b32 {v(vT1)}, 31, {v(vL)}"); A(f"v_lshrrev_b32 {v(vT0)}, 5, {v(vL)}"); A(f"v_lshlrev_b32 {v(vT0)}, 2, {v(vT0)}"); A(f"v_sub_u32 {v(vT1)}, {v(vT1)}, {v(vT0)}")
    A(f"v_mov_b32 {v(vT0)}, {fb(-1e9 * LOG2E)}")
    for i in range(16):
        A(f"v_cmp_gt_i32 vcc, {8*(i >> 2) + (i & 3)}, {v(vT1)}"); A(f"v_cndmask_b32 {v(MSK+i)}, 0, {v(vT0)}, vcc")
    A(f"v_and_b32 {v(vT1)}, 1, {v(vL)}"); A(f"v_lshlrev_b32 {v(vT1)}, 4, {v(vT1)}"); A(f"v_mov_b32 {v(vT0)}, 0x3f80"); A(f"v_lshlrev_b32 {v(vT1)}, {v(vT1)}, {v(vT0)}")
    A(f"v_bfe_u32 {v(vT0)}, {v(vL)}, 1, 3")
    for r in range(4): A(f"v_cmp_eq_u32 vcc, {2*r}, {v(vT0)}"); A(f"v_cndmask_b32 {v(SEL+r)}, 0, {v(vT1)}, vcc")
    bits(A, vXO, [(3, 1, 5), (2, 1, 3), (5, 1, 4), (4, 1, 2)])
    A(f"s_lshr_b32 s{sA}, s{sH}, 3"); A(f"s_lshl_b32 s{sA}, s{sA}, 8"); A(f"s_lshl_b32 s{sB}, s{sWV}, 6"); A(f"s_add_u32 s{sA}, s{sA}, s{sB}"); A(f"v_add_u32 {v(vXO)}, s{sA}, {v(vXO)}")
    A.wait(lg=0)
    A(f"global_load_dword {v(vT1)}, {v(vXO)}, s[4:5]")
    A(f"v_lshlrev_b32 {v(B2)}, 16, {v(vT1)}"); A(f"v_and_b32 {v(B2+1)}, 0xffff0000, {v(vT1)}")
    A(f"v_and_b32 {v(vT0)}, 3, {v(vL)}"); A(f"v_lshl_add_u32 {v(vXO)}, {v(vT0)}, 10, {v(vXO)}")
    A(f"s_and_b32 s{sA}, s{sH}, 7"); A(f"s_lshl_b32 s{sA}, s{sA}, 12"); A(f"v_add_u32 {v(vXO)}, s{sA}, {v(vXO)}")
    load_weights(A, [("n", sW1, sD, 8192), ("k", sW2, sE)])
    TS(5)
    vPR, vPL = vS1, vS2
    bits(A, vPR, [(4, 2, 10), (0, 4, 4)]); A(f"s_lshl_b32 s{sA}, s{sWV}, 8"); A(f"v_add_u32 {v(vPR)}, s{sA}, {v(vPR)}")
    A(f"v_lshrrev_b32 {v(vT0)}, 5, {v(vL)}"); A(f"v_lshl_add_u32 {v(vPL)}, {v(vT0)}, 30, {v(vPR)}")
    bits(A, vKM, [(5, 1, 8), (0, 3, 4)], KVL)
    bits(A, vVM, [(3, 1, 9), (5, 1, 8), (4, 1, 7), (0, 3, 4)], KVL + 8); A(f"s_lshl_b32 s{sA}, s{sWV}, 10"); A(f"v_add_u32 {v(vVM)}, s{sA}, {v(vVM)}")
    A(f"v_mov_b64 {v(VM+2,2)}, 0"); A(f"v_mov_b64 {v(PM+2,2)}, 0")
    def part_base():
        A(f"s_mul_i32 s{sA}, s{sSEG}, {SEGP}"); A(f"s_mul_i32 s{sB}, s{sH}, {CHUNK}"); A(f"s_add_u32 s{sA}, s{sA}, s{sB}"); A(f"s_add_u32 s{sA}, s{sA}, {PART_OFF}")
    def sum_sources(acc, land, ns):
        for n in ns:
            A(f"s_add_u32 s{sB}, s{sA}, {n*4096}"); A(f"buffer_load_dwordx4 {v(land+4*(n % 8),4)}, {v(vPL if n == 11 else vPR)}, {s(sWS,4)}, s{sB} offen sc1")
        for n in ns: A(f"v_mfma_f32_16x16x32_bf16 {v(acc,4)}, {v(SEL,4)}, {v(land+4*(n % 8),4)}, {v(acc,4) if n != ns[0] else 0}")
    def att_body():
        A(f"s_lshl_b32 s{sA}, s{sSEG}, 19"); A(f"s_lshl_b32 s{sB}, s{sH}, 14"); A(f"s_add_u32 s{sA}, s{sA}, s{sB}")
        A(f"s_lshl_b32 s{sB}, s{sWV}, 12"); A(f"s_add_u32 s{sC}, s{sA}, s{sB}")
        for k in range(8):
            A(f"buffer_load_dwordx4 {v(KF+4*k,4)}, {v(vKA)}, {s(sWS,4)}, s{sA} offen offset:{(k & 1)*1024} sc1")
            if k & 1: A(f"s_add_u32 s{sA}, s{sA}, 4096")
        for ap in range(2): A(f"buffer_load_dwordx4 {v(VF+4*ap,4)}, {v(vL16)}, {s(sWS,4)}, s{sC} offen offset:{2048 + ap*1024} sc1")
        A(f"s_lshl_b32 s{sA}, s{sSEG}, 15"); A(f"buffer_load_dword {v(XV)}, {v(vXO)}, {s(sXR,4)}, s{sA} offen")
        gemm1(A, False); pack(A, AC1, AC1); exchange(A, AC1)
        for k in range(8): A(f"v_mfma_f32_32x32x16_bf16 {v(AC2,16)}, {v(KF+4*k,4)}, {v(BR+4*k,4)}, {v(AC2,16) if k else v(MSK,16)}")
        A.wait(vm=0)
        wait_flags(A, cfg, "Wat_mf", MF, 14); part_base(); sum_sources(GA, KM, [8, 9, 10, 11])
        MX = vT3
        A(f"v_max3_f32 {v(MX)}, {v(AC2)}, {v(AC2+1)}, {v(AC2+2)}")
        for i in range(3, 15, 2): A(f"v_max3_f32 {v(MX)}, {v(MX)}, {v(AC2+i)}, {v(AC2+i+1)}")
        A(f"v_max_f32 {v(MX)}, {v(MX)}, {v(AC2+15)}")
        for r in range(2): A(f"v_add_f32 {v(GA+r)}, {v(GA+r)}, {v(B2+r)}")
        for r in range(2): A(f"v_mul_f32 {v(GA+2+r)}, {fb(-LOG2E)}, {v(GA+r)}")
        for r in range(2): A(f"v_exp_f32 {v(GA+2+r)}, {v(GA+2+r)}")
        for r in range(2): A(f"v_add_f32 {v(GA+2+r)}, 1.0, {v(GA+2+r)}")
        for r in range(2): A(f"v_rcp_f32 {v(GA+2+r)}, {v(GA+2+r)}")
        for r in range(2): A(f"v_mul_f32 {v(GA+r)}, {v(GA+r)}, {v(GA+2+r)}")
        A(f"v_and_b32 {v(XV+1)}, 0xffff0000, {v(XV)}"); A(f"v_lshlrev_b32 {v(XV)}, 16, {v(XV)}")
        A(f"s_lshl_b32 s{sA}, s{sSEG}, 17"); A(f"s_lshl_b32 s{sB}, s{sH}, 12"); A(f"s_add_u32 s{sA}, s{sA}, s{sB}")
        A(f"s_lshl_b32 s{sB}, s{sWV}, 10"); A(f"s_add_u32 s{sA}, s{sA}, s{sB}"); A(f"s_add_u32 s{sA}, s{sA}, {KVM_OFF + (1 << 17)}")
        A(f"s_add_u32 s{sB}, s{sB}, {KVL}"); A(f"v_add_u32 {v(vT2)}, s{sB}, {v(vL16)}")
        A.label("Wat_km")
        A(f"buffer_load_dwordx4 {v(KM,4)}, {v(vL16)}, {s(sWS,4)}, s{sA} offen sc1")
        A(f"ds_write_b128 {v(vT2)}, {v(KM,4)}")
        A(f"v_max3_u32 {v(vT0)}, {v(KM)}, {v(KM+1)}, {v(KM+2)}"); A(f"v_max_u32 {v(vT0)}, {v(vT0)}, {v(KM+3)}")
        A(f"v_cmp_eq_u32 vcc, -1, {v(vT0)}"); A("s_cbranch_vccz Wat_km_ok")
        spin(A, "Wat_km", cfg)
        A.label("Wat_km_ok")
        A.wait(lg=0); A("s_barrier")
        for k in range(8):
            for t in range(2): A(f"ds_read_b64 {v(KM+4*k+2*t,2)}, {v(vKM)} offset:{(2*((k >> 1) & 1) + t)*1024 + (k & 1)*512 + (k >> 2)*128}")
            if k == 3: A(f"v_mfma_f32_32x32x16_bf16 {v(SMA,16)}, {v(KM,4)}, {v(BR,4)}, 0")
        A(f"ds_read_b64 {v(VM,2)}, {v(vVM)}")
        for k in range(1, 8): A(f"v_mfma_f32_32x32x16_bf16 {v(SMA,16)}, {v(KM+4*k,4)}, {v(BR+4*k,4)}, {v(SMA,16)}")
        for r in range(4): A(f"v_mul_f32 {v(SMA+r)}, {fb(CSC)}, {v(SMA+r)}")
        A(f"v_max3_f32 {v(MX)}, {v(MX)}, {v(SMA)}, {v(SMA+1)}"); A(f"v_max3_f32 {v(MX)}, {v(MX)}, {v(SMA+2)}, {v(SMA+3)}")
        A(f"v_mov_b32 {v(vT0)}, {v(MX)}"); A(f"v_permlane32_swap_b32 {v(MX)}, {v(vT0)}"); A(f"v_max_f32 {v(MX)}, {v(MX)}, {v(vT0)}")
        sc = [AC2 + i for i in range(16)] + [SMA + r for r in range(4)]
        for r in sc: A(f"v_sub_f32 {v(r)}, {v(r)}, {v(MX)}")
        for r in sc: A(f"v_exp_f32 {v(r)}, {v(r)}")
        PB = KM
        pack(A, PB, AC2); A(f"v_cvt_pk_bf16_f32 {v(PM)}, {v(SMA)}, {v(SMA+1)}"); A(f"v_cvt_pk_bf16_f32 {v(PM+1)}, {v(SMA+2)}, {v(SMA+3)}")
        A(f"v_mfma_f32_32x32x16_bf16 {v(AC1,16)}, {v(VF,4)}, {v(PB,4)}, 0")
        for i in range(0, 8, 2): A(f"v_add_f32 {v(sc[i])}, {v(sc[i])}, {v(sc[i+1])}")
        A(f"v_mfma_f32_32x32x16_bf16 {v(AC1,16)}, {v(VF+4,4)}, {v(PB+4,4)}, {v(AC1,16)}")
        for i in range(8, 20, 2): A(f"v_add_f32 {v(sc[i])}, {v(sc[i])}, {v(sc[i+1])}")
        A(f"v_mfma_f32_32x32x16_bf16 {v(AC1,16)}, {v(VM,4)}, {v(PM,4)}, {v(AC1,16)}")
        for i in range(2, 20, 2): A(f"v_add_f32 {v(sc[0])}, {v(sc[0])}, {v(sc[i])}")
        A(f"v_mov_b32 {v(vT0)}, {v(sc[0])}"); A(f"v_permlane32_swap_b32 {v(sc[0])}, {v(vT0)}"); A(f"v_add_f32 {v(vT0)}, {v(sc[0])}, {v(vT0)}"); A(f"v_rcp_f32 {v(vT0)}, {v(vT0)}")
        for i in range(0, 16, 2): A(f"v_pk_mul_f32 {v(AC1+i,2)}, {v(AC1+i,2)}, {v(vT0,2)} op_sel_hi:[1,0]")
        pack(A, AC1, AC1); exchange(A, AC1); gemm2(A)
    def att_fin():
        flag(A, "Wat_f", AF, 7, sH, 2)
        wait_flags(A, cfg, "Wat_af", AF, 32); part_base(); sum_sources(RA, KM, list(range(8)))
        for r in range(2): A(f"v_fmac_f32 {v(XV+r)}, {v(RA+r)}, {v(GA+r)}")
        A(f"v_cvt_pk_bf16_f32 {v(XV)}, {v(XV)}, {v(XV+1)}")
        A(f"s_lshl_b32 s{sA}, s{sSEG}, 15"); A(f"buffer_store_dword {v(XV)}, {v(vXO)}, {s(sOUT,4)}, s{sA} offen")
    A(f"s_mov_b32 s{sSEG}, s{sT}"); A(f"s_mov_b32 s{sEND}, 64"); A(f"s_mov_b32 s{sSRC}, s{sH}")
    seg_loop(A, cfg, "Wat", XN_OFF, 7, att_body, att_fin)
    TS(6)
```

```python
import sys; sys.path.insert(0,"work")
from gen import *
import team as TM, worker as WK
NAME = "recurrent_scan__memory_aug_recurrent_mem_tr__mixer_channel_mlp__prompt"
BEST = dict(burst=True, x1=[[30],[50],[70],[90]], d2=[50,50,40,16], g2=[[],[],[],[10,10,10]], tp=[(0,37,0)]*4)
def kernel(cfg):
    A = Asm(cfg.get("verbose")); meas = cfg.get("meas")
    A("s_cmp_ge_u32 s2, 256"); A("s_cbranch_scc1 Lexit")
    if meas: A("s_memrealtime s[56:57]", tag="stamp")
    A("s_load_dwordx2 s[6:7], s[0:1], 104"); A("s_load_dwordx2 s[8:9], s[0:1], 112"); TM.entry_loads(A)
    A("v_lshrrev_b32 v1, 6, v0"); A("s_mov_b32 s10, 0x10000000"); A("s_mov_b32 s11, 0x20000"); A("v_readfirstlane_b32 s17, v1")
    if meas:
        for r in range(90, 102): A(f"s_mov_b32 s{r}, 0")
    A("s_and_b32 s3, s2, 7"); A("s_lshr_b32 s16, s2, 3")
    if meas: A.wait(lg=0); A("s_mov_b32 s69, s56")
    A("s_cmp_eq_u32 s3, 0"); A("s_cbranch_scc1 Lteam")
    A("s_branch Lwork")
    A.label("Lexit"); A("s_endpgm")
    def dump(A, regs, slot):
        A.wait(vm=0, lg=0)
        for j, r in enumerate(regs): A(f"v_mov_b32 v{20+j}, s{r}")
        A(f"s_lshl_b32 s19, s2, 8"); A(f"s_add_u32 s19, s19, {slot}"); A(f"s_add_u32 s19, s19, {200<<20}")
        for j in range(4): A(f"buffer_store_dwordx4 v[{20+4*j}:{23+4*j}], off, s[8:11], s19 offset:{16*j}")
        A.wait(vm=0)
    A.forget(); A.label("Lteam")
    def fin(A, w):
        if meas:
            A("s_memrealtime s[88:89]"); A("s_memtime s[62:63]"); A.wait(lg=0); A("s_sub_u32 s62, s62, s64")
            dump(A, [69, 66, 60, 88, 62, 99, 100, TM.sGIVE, TM.sSPIN, 70, 72, 74, 76, 78, 80, 82], w * 64)
        A("s_endpgm")
    TM.team(A, cfg, fin)
    A.forget(); A.label("Lwork"); A.wait(lg=0)
    A("s_sub_u32 s3, s3, 1"); A("s_lshl_b32 s3, s3, 5"); A("s_add_u32 s16, s16, s3")
    WK.worker(A, cfg)
    if meas:
        A("s_lshl_b32 s17, s17, 6"); dump(A, [69, 70, 72, 74, 76, 78, 80, 82, WK.sSPIN] + [69] * 7, "s17")
    A("s_endpgm")
    return A.text()
def full_text(cfg):
    ref = open(f"cdna_kernels/{NAME}.s.ref").read()
    head = ref[:ref.index("; Override launch geometry")]
    t = head + "; One workgroup per CU: 32 carry the recurrence (one head each), 224 do everything that is parallel over tokens.\n"
    t += "; @launch grid=(256,1,1) block=(256,1,1) lds=163840\n"
    t += f'.amdgcn_target "amdgcn-amd-amdhsa--gfx950"\n.text\n.globl {NAME}_kernel\n.p2align 8\n.type {NAME}_kernel,@function\n{NAME}_kernel:\n'
    t += kernel(cfg)
    t += f'''.section .rodata,"a"
.p2align 6
.amdhsa_kernel {NAME}_kernel
  .amdhsa_next_free_vgpr 512
  .amdhsa_next_free_sgpr 102
  .amdhsa_accum_offset 256
  .amdhsa_group_segment_fixed_size 0
  .amdhsa_kernarg_size 120
  .amdhsa_user_sgpr_count 2
  .amdhsa_user_sgpr_kernarg_segment_ptr 1
  .amdhsa_system_sgpr_workgroup_id_x 1
.end_amdhsa_kernel
'''
    return t
if __name__ == "__main__":
    cfg = dict(BEST); cfg["meas"] = False
    if len(sys.argv) > 2: cfg.update(eval(sys.argv[2]))
    out = sys.argv[1] if len(sys.argv) > 1 else f"cdna_kernels/{NAME}.s"
    open(out, "w").write(full_text(cfg)); print("wrote", out)
```

```python
import sys; sys.path.insert(0,"work")
from gen import *
import team as TM, worker as WK
NAME = "recurrent_scan__memory_aug_recurrent_mem_tr__mixer_channel_mlp__prompt"
BEST = dict(x1=[[25],[45],[25],[40]], d2=[20,10,0,10], g2=[[],[],[24],[16,16]], tp=[(0,99),(0,99),(99,0),(99,0)], look=3, wtouch=False, vp=[[-1,-1]]*4)
def kernel(cfg):
    A = Asm(cfg.get("verbose")); meas = cfg.get("meas")
    A("s_cmp_ge_u32 s2, 256"); A("s_cbranch_scc1 Lexit")
    if meas: A("s_memrealtime s[56:57]", tag="stamp")
    A("s_load_dwordx2 s[6:7], s[0:1], 104"); A("s_load_dwordx2 s[8:9], s[0:1], 112"); TM.entry_loads(A)
    A("v_lshrrev_b32 v1, 6, v0"); A("s_mov_b32 s10, 0x10000000"); A("s_mov_b32 s11, 0x20000"); A("v_readfirstlane_b32 s17, v1")
    if meas:
        for r in range(90, 102): A(f"s_mov_b32 s{r}, 0")
    A("s_and_b32 s3, s2, 7"); A("s_lshr_b32 s16, s2, 3")
    if meas: A.wait(lg=0); A("s_mov_b32 s69, s56")
    A("s_cmp_eq_u32 s3, 0"); A("s_cbranch_scc1 Lteam")
    A("s_branch Lwork")
    A.label("Lexit"); A("s_endpgm")
    def dump(A, regs, slot):
        A.wait(vm=0, lg=0)
        for j, r in enumerate(regs): A(f"v_mov_b32 v{20+j}, s{r}")
        A(f"s_lshl_b32 s19, s2, 8"); A(f"s_add_u32 s19, s19, {slot}"); A(f"s_add_u32 s19, s19, {200<<20}")
        for j in range(4): A(f"buffer_store_dwordx4 v[{20+4*j}:{23+4*j}], off, s[8:11], s19 offset:{16*j}")
        if cfg.get("dbgout"):
            lb = A.newlabel("Ldbg"); o = 8 if slot != "s17" else 32
            A(f"s_cmp_gt_u32 s2, 1"); A(f"s_cbranch_scc1 {lb}")
            for j in range(1, 8): A(f"v_sub_u32 v{20+j}, v{20+j}, v20")
            A("v_mov_b32 v19, 0")
            if slot != "s17": A("global_store_dwordx4 v19, v[20:23], s[6:7] offset:16")
            else: A("global_store_dwordx4 v19, v[20:23], s[6:7] offset:32"); A("global_store_dwordx4 v19, v[24:27], s[6:7] offset:48")
            A.label(lb)
        A.wait(vm=0)
    A.forget(); A.label("Lteam")
    def fin(A, w):
        if meas:
            A("s_memrealtime s[88:89]"); A("s_memtime s[62:63]"); A.wait(lg=0); A("s_sub_u32 s62, s62, s64")
            dump(A, [69, 66, 60, 88, 62, 99, 100, TM.sGIVE, TM.sSPIN, 70, 72, 74, 76, 78, 80, 82], w * 64)
        A("s_endpgm")
    TM.team(A, cfg, fin)
    A.forget(); A.label("Lwork"); A.wait(lg=0)
    A("s_sub_u32 s3, s3, 1"); A("s_lshl_b32 s3, s3, 5"); A("s_add_u32 s16, s16, s3")
    WK.worker(A, cfg)
    if meas:
        A("s_lshl_b32 s17, s17, 6"); dump(A, [69, 70, 72, 74, 76, 78, 80, 82, WK.sSPIN, 84, 86, 88, 90, 92, 94, WK.sT], "s17")
    A("s_endpgm")
    return A.text()
def full_text(cfg):
    ref = open(f"cdna_kernels/{NAME}.s.ref").read()
    head = ref[:ref.index("; Override launch geometry")]
    t = head + "; One workgroup per CU: 32 carry the recurrence (one head each), 224 do everything that is parallel over tokens.\n"
    t += "; @launch grid=(256,1,1) block=(256,1,1) lds=163840\n"
    t += f'.amdgcn_target "amdgcn-amd-amdhsa--gfx950"\n.text\n.globl {NAME}_kernel\n.p2align 8\n.type {NAME}_kernel,@function\n{NAME}_kernel:\n'
    t += kernel(cfg)
    t += f'''.section .rodata,"a"
.p2align 6
.amdhsa_kernel {NAME}_kernel
  .amdhsa_next_free_vgpr 512
  .amdhsa_next_free_sgpr 102
  .amdhsa_accum_offset 256
  .amdhsa_group_segment_fixed_size 0
  .amdhsa_kernarg_size 120
  .amdhsa_user_sgpr_count 2
  .amdhsa_user_sgpr_kernarg_segment_ptr 1
  .amdhsa_system_sgpr_workgroup_id_x 1
.end_amdhsa_kernel
'''
    return t
if __name__ == "__main__":
    cfg = dict(BEST); cfg["meas"] = False
    if len(sys.argv) > 2: cfg.update(eval(sys.argv[2]))
    out = sys.argv[1] if len(sys.argv) > 1 else f"cdna_kernels/{NAME}.s"
    open(out, "w").write(full_text(cfg)); print("wrote", out)
```

```python
from gen import *
import struct

X = 131072
TRACE = 0
KV_OFF, KVM_OFF, IN1_OFF = 4096, 33 << 20, (50 << 20) + X
MEM_OFF = IN1_OFF + (512 << 10)
MEMG_OFF = 58 << 20
KVD_OFF = 59 << 20
MEMB, QT, PX, OX, SEL, MXB = 0, 8192, 12288, 13312, 17408, 18432
CSC = 0.12751743032665168
NSEG = 64

vIDX, vL16, vWL, vVX, vKW, vTR, vOR, vS1, vPUB, vKX, vTOUCH, vJ0, vPW = range(0, 13)
vJ1 = 15
vSEN, vLa, vLb = 13, 14, 15
A0 = 16
QA, KA, VA = 48, 56, 64
KX, VX = 72, 80
T = 88
LAND = [KX, VX, T, T + 8, T + 16, T + 24, T + 32]
sWS, sW2 = 8, 12
sH, sSTEP, sKV, sKVM, sST1, sST1b, sLD1, sRS1, sPUB, sRS2, sLD2, sSPIN, sGIVE, sT0, sT1, sC = range(16, 32)
sC2 = 32
sLO, sHI = 34, 35
sONE, sHLF, sTAG, sSPN2, sMSK, sKVb, sKVt = 42, 44, 46, 47, 48, 50, 51
sNW, sNR = 68, 41
sKM, sKF = 52, 54
KVF = 56 << 20

ORDER = 'qkvo'
def frag_places(w):
    lu = [("q", 0), ("q", 1), ("q", 2), ("k", 0), ("k", 1), ("k", 2), ("o", 6), ("o", 7)]
    units = [(m, n) for m in ORDER for n in range(8) if (m, n) not in lu] + lu
    place = {}; r = 128; frs = []
    for k, (m, n) in enumerate(units):
        fr = [(m, t, n) for t in range(2)] if m != "o" else [("o", n >> 1, (2 * (n & 1) + fi - w) & 3) for fi in range(2)]
        for fi, f in enumerate(fr):
            if k < 24: place[f] = r; r += 8
            else: place[f] = ("lds", 2 * (k - 24) + fi)
        frs.append(fr)
    assert r == 512
    return place, units, frs

def entry_loads(A):
    A(f"s_load_dwordx4 s[40:43], s[0:1], 16"); A(f"s_load_dwordx4 s[44:47], s[0:1], 32"); A(f"s_load_dwordx2 s[48:49], s[0:1], 8")

def prologue(A, w, cfg):
    place, units, frs = frag_places(w)
    L, t0, t1, t2 = 100, 101, 102, 103
    vPS, vOS, vP, vO = 104, 108, 120, 124
    if cfg.get("alone"): entry_loads(A)
    A(f"v_and_b32 {v(L)}, 63, v0")
    def bits(dst, terms, const=0):
        A(f"v_mov_b32 {v(dst)}, {const}")
        for (b, n, sh) in terms:
            A(f"v_bfe_u32 {v(t0)}, {v(L)}, {b}, {n}"); A(f"v_lshl_add_u32 {v(dst)}, {v(t0)}, {sh}, {v(dst)}")
    A(f"v_lshrrev_b32 {v(t1)}, 1, {v(L)}"); A(f"v_and_b32 {v(t1)}, 8, {v(t1)}"); A(f"v_xor_b32 {v(t1)}, {v(t1)}, {v(L)}"); A(f"v_and_b32 {v(t1)}, 15, {v(t1)}"); A(f"v_lshlrev_b32 {v(t1)}, 4, {v(t1)}")
    A(f"v_lshrrev_b32 {v(t2)}, 4, {v(L)}")
    A(f"v_lshl_add_u32 {v(vPS)}, {v(t2)}, 13, {v(t1)}"); A(f"v_lshl_add_u32 {v(vOS)}, {v(t2)}, 10, {v(t1)}")
    if w & 1: A(f"v_xor_b32 {v(vPS)}, 16, {v(vPS)}")
    A(f"v_xor_b32 {v(vPS+1)}, 64, {v(vPS)}")
    A(f"v_xor_b32 {v(vOS+1)}, 64, {v(vOS)}")
    base = {"q": 52, "k": 56, "v": 60, "o": 64}
    for i, m in enumerate("qkvo"): A(f"s_mov_b32 s{base[m]+2}, 0x400000"); A(f"s_mov_b32 s{base[m]+3}, 0x20000")
    A(f"s_lshl_b32 s50, s{sH}, 8"); A(f"s_lshl_b32 s51, s{sH}, 17")
    A.wait(lg=0)
    for i, m in enumerate("qkvo"): A(f"s_mov_b64 {s(base[m],2)}, {s(40+2*i,2)}")
    def dma(un):
        m, k = units[un]
        for n in range(4):
            row = 16 * w + 4 * n
            if m != "o": so = (64 * k + row) * 8192; sb = 50; vs = vPS + (n & 1)
            else: so = (64 * (k & 1) + row) * 1024 + 256 * (k >> 1); sb = 51; vs = vOS + (n >> 1)
            A(f"s_mov_b32 m0, {w*32768 + (un % 8)*4096 + n*1024}"); A(f"s_add_u32 s{sT0}, s{sb}, {so}")
            A(f"buffer_load_dwordx4 {v(vs)}, {s(base[m],4)}, s{sT0} offen {cfg.get('wfl','')} lds", tag=("u", un))
    def PS(n):
        if cfg.get("pstamp"): A(f"s_memrealtime s[{70+2*n}:{71+2*n}]", tag="stamp")
    def c_o():
        bits(vO, [(2, 1, 8), (5, 1, 10), (4, 1, 11), (2, 1, 7), (4, 1, 6), (3, 1, 5), (0, 2, 3)])
        A(f"v_xor_b32 {v(vO)}, {w*64}, {v(vO)}"); A(f"v_add_u32 {v(vO+1)}, 65536, {v(vO)}")
    PS(0)
    dma(0); dma(1)
    bits(vP, [(2, 1, 8), (4, 2, 10), (3, 1, 15), (2, 1, 7), (4, 1, 6), (1, 1, 5), (3, 1, 4), (0, 1, 3)])
    A(f"v_xor_b32 {v(vP)}, {w*64}, {v(vP)}"); A(f"v_xor_b32 {v(vP+1)}, 16, {v(vP)}")
    for k in range(2): A(f"v_add_u32 {v(vP+2+k)}, 65536, {v(vP+k)}")
    LA = cfg.get('look', 4)
    c_o()
    for un in range(2, LA): dma(un)
    PS(1)
    def c_mem0():
        bits(t2, [(4, 1, 10), (5, 1, 5), (0, 2, 2)], 256 * w)
        A(f"s_and_b32 s{sT0}, s{sH}, 3"); A(f"s_lshl_b32 s{sT0}, s{sT0}, 11"); A(f"s_lshr_b32 s{sT1}, s{sH}, 3"); A(f"s_lshl_b32 s{sT1}, s{sT1}, 6"); A(f"s_add_u32 s{sT0}, s{sT0}, s{sT1}")
        A(f"s_and_b32 s{sT1}, s{sH}, 4"); A(f"s_lshl_b32 s{sT1}, s{sT1}, 2"); A(f"s_add_u32 s{sT0}, s{sT0}, s{sT1}"); A(f"v_add_u32 {v(t2)}, s{sT0}, {v(t2)}")
        A(f"global_load_dword {v(110)}, {v(t2)}, s[48:49]")
    def c_in1():
        bits(vL16, [(0, 6, 4)], X)
        for r in range(4): A(f"v_mov_b32 {v(112+r)}, -1")
        A(f"s_lshl_b32 s{sLD1}, s{sH}, 13"); A(f"s_add_u32 s{sLD1}, s{sLD1}, {IN1_OFF + w*2048 - X}")
        A(f"s_xor_b32 s{sRS1}, s{sLD1}, {256<<10}")
        for sr in (sLD1, sRS1):
            for n in range(2): A(f"buffer_store_dwordx4 {v(112,4)}, {v(vL16)}, {s(sWS,4)}, s{sr} offen offset:{n*1024} sc1")
    def c_ring():
        bits(vPUB, [(4, 2, 4), (0, 2, 2), (2, 1, 30)])
        A(f"v_bfe_u32 {v(t0)}, {v(L)}, 3, 1"); A(f"v_lshlrev_b32 {v(t0)}, 30, {v(t0)}"); A(f"v_or_b32 {v(vPUB)}, {v(t0)}, {v(vPUB)}")
        A(f"s_lshl_b32 s{sPUB}, s{sH}, 6"); A(f"s_add_u32 s{sPUB}, s{sPUB}, {MEM_OFF + w*2048}")
        for sl in (1, 2, 3):
            A(f"s_add_u32 s{sT0}, s{sPUB}, {sl*8192}"); A(f"buffer_store_dword {v(112)}, {v(vPUB)}, {s(sWS,4)}, s{sT0} offen sc1")
        A(f"buffer_store_dword {v(110)}, {v(vPUB)}, {s(sWS,4)}, s{sPUB} offen sc1")
    def c_sel():
        bits(t2, [(0, 2, 2), (2, 2, 0)])
        A(f"v_and_b32 {v(t1)}, 1, {v(t2)}"); A(f"v_lshlrev_b32 {v(t1)}, 4, {v(t1)}"); A(f"v_mov_b32 {v(t0)}, 0x3f80"); A(f"v_lshlrev_b32 {v(t1)}, {v(t1)}, {v(t0)}")
        A(f"v_lshrrev_b32 {v(t2)}, 1, {v(t2)}")
        for r in range(4):
            A(f"v_cmp_eq_u32 vcc, {r}, {v(t2)}"); A(f"v_cndmask_b32 {v(112+r)}, 0, {v(t1)}, vcc")
        A(f"ds_write_b128 {v(vL16)}, {v(112,4)} offset:{SEL}")
        A(f"v_bfe_u32 {v(t0)}, {v(L)}, 1, 1"); A(f"v_mul_u32_u24 {v(t0)}, 0xaaaa, {v(t0)}"); A(f"v_add_u32 {v(vIDX)}, 0x4444, {v(t0)}")
    def c_scal():
        A(f"s_lshl_b32 s{sKV}, s{sH}, 14"); A(f"s_add_u32 s{sKV}, s{sKV}, {KV_OFF}")
        A(f"s_add_u32 s{sKVM}, s{sPUB}, {MEMG_OFF - MEM_OFF}"); A(f"v_mov_b32 {v(vLa)}, {v(110)}")
        A(f"s_lshl_b32 s{sST1}, s{sH}, 6"); A(f"s_add_u32 s{sST1}, s{sST1}, {IN1_OFF - X + w*65536}")
        A(f"s_mov_b32 s{sSTEP}, 0"); A(f"s_mov_b32 s{sGIVE}, 0")
        A(f"s_mov_b32 s{sC2}, {struct.unpack('<I', struct.pack('<f', CSC))[0]:#x}")
        for r in range(2): A(f"s_mov_b32 s{sONE+r}, 0x3f803f80"); A(f"s_mov_b32 s{sHLF+r}, 0x3f003f00"); A(f"s_mov_b32 s{sMSK+r}, 0x33333333")
        A(f"s_mov_b32 s{sLO}, {(127-60)<<23:#x}"); A(f"s_mov_b32 s{sHI}, {120<<23:#x}")
    chores = {0: c_mem0, 2: lambda: bits(vWL, [(0, 6, 4)], w * 32768), 3: lambda: bits(vKW, [(0, 3, 5), (4, 2, 3), (3, 1, 2)], X + QT + w * 1024),
              4: lambda: bits(vTR, [(5, 1, 10), (0, 5, 3)], X + QT), 5: lambda: bits(vOR, [(2, 4, 6), (0, 1, 4)], X),
              6: lambda: bits(vPW, [(0, 4, 4), (4, 2, 2)], X + PX + w * 256), 7: lambda: bits(vS1, [(3, 1, 15), (4, 2, 13), (0, 3, 3)], X),
              8: c_in1, 9: c_ring, 10: lambda: bits(vVX, [(4, 2, 9), (3, 1, 8), (0, 3, 4)], w * 4096),
              11: lambda: bits(vKX, [(5, 1, 12), (4, 1, 10), (0, 4, 4)], w * 256), 12: c_sel, 13: c_scal}
    def settle(un):
        for q in range(4): A(f"ds_write_b128 {v(vWL)}, {v(A0+16*(un & 1)+4*q,4)} offset:{(un % 8)*4096 + q*1024}")
    for un in range(32):
        slot = un % 8
        A.wait_tag(("u", un)); A.wait(lg=0); A("s_barrier")
        if un % 8 == 0: PS(2 + un // 8)
        if un == 31: PS(6)
        if un == 17: cfg["arrive"](A, w)
        for fi, f in enumerate(frs[un]):
            dst = place[f] if un < 24 else A0 + 16 * (un & 1) + 8 * fi
            for p in range(4):
                if f[0] != "o": A(f"ds_read_b64_tr_b16 {u(dst+2*p,2)}, {v(vP + 2*(p>>1) + fi)} offset:{slot*4096 + (p&1)*512}")
                else: A(f"ds_read_b64_tr_b16 {u(dst+2*p,2)}, {v(vO+fi)} offset:{slot*4096 + (p&1)*512 + (p>>1)*32768}")
        if un > 24: settle(un - 1)
        if un + LA < 32: dma(un + LA)
        if un + LA == 32 and not cfg.get("alone"):
            A("v_mov_b32 v118, 0"); A(f"v_lshrrev_b32 {v(vJ0)}, 2, {v(vL16)}"); A(f"s_lshl_b32 s{sT0}, s{sH}, 8"); A(f"s_add_u32 s{sT0}, s{sT0}, {KVF - (X >> 2)}")
            A("global_load_dwordx2 v[114:115], v118, s[6:7] offset:128 sc1"); A("global_load_dwordx2 v[116:117], v118, s[6:7] sc1")
            A(f"buffer_load_dword {v(vJ0)}, {v(vJ0)}, {s(sWS,4)}, s{sT0} offen sc1")
        if un in chores: chores[un]()
    A.wait(lg=0); A("s_barrier"); settle(31)
    A.wait(lg=0)

def loop(A, w, cfg, sc):
    place = frag_places(w)[0]
    stamp = cfg.get("stamp"); meas = cfg.get("meas", True); spinmax = cfg.get("spin", 100000)
    def ST(n):
        if stamp and n in stamp: k = stamp.index(n); A(f"s_memtime s[{70+2*k}:{71+2*k}]", tag="stamp")
    lab = lambda n: f"T{n}_{w}{sc}"
    L0, L1, L2, L3 = T, T + 8, T + 16, T + 24
    ONE, VB = T + 32, T + 36
    land = {("q",0,0): A0 + 16, ("q",1,0): VA, ("q",0,1): L0, ("q",1,1): L1, ("q",0,2): L2, ("q",1,2): L3,
            ("k",0,0): L0, ("k",0,1): L1, ("k",0,2): L2, ("k",1,0): L3, ("k",1,1): L0, ("k",1,2): L1,
            ("o",3,0): KX, ("o",3,1): L2, ("o",3,2): L3, ("o",3,3): KA}
    W = lambda f: u(land[f] if f in land else place[f], 8)
    wr = lambda f: [f"ds_read_b128 {v(land[f]+4*hh,4)}, {v(vWL)} offset:{place[f][1]*2048 + hh*1024}" for hh in range(2)]
    acc = {"q": QA, "k": KA, "v": VA}
    def sm(m, t, kk): return f"v_smfmac_f32_16x16x64_bf16 {v(acc[m]+4*t,4)}, {v(A0+4*kk,4)}, {W((m,t,kk))}, {v(vIDX)}"
    def put(y):
        if callable(y): y()
        elif isinstance(y, tuple): A(y[0], tag=y[1])
        else: A(y)
    def weave(mf, fill, nm="-", nxt=None):
        assert max(fill) < len(mf)
        for i, x in enumerate(mf):
            A(x); ST(f"{nm}{i}")
            f = fill.get(i, []); nx = mf[i + 1] if i + 1 < len(mf) else nxt
            for k, y in enumerate(f):
                if k == len(f) - 1 and isinstance(y, str) and y.startswith("v_") and nx: A.prewait(nx, y)
                put(y)
    pw = lambda *x: (lambda: A.prewait(*x))
    def bar(tag):
        def f(): A.wait_tag(tag); A("s_barrier")
        return f
    zero = lambda r: f"v_mov_b64 {v(r,2)}, 0"
    ad = lambda d, x, y: f"v_add_f32 {v(d)}, {v(x)}, {v(y)}"
    pk = lambda d, x, y: f"v_pk_add_f32 {v(d,2)}, {v(x,2)}, {v(y,2)}"
    cv = lambda d, x: f"v_cvt_pk_bf16_f32 {v(d)}, {v(x)}, {v(x+1)}"
    trr = lambda dst, m, t, off: f"ds_read_b64_tr_b16 {v(dst,2)}, {v(vTR)} offset:{off + m*2048 + t*256}"
    win = sum([wr(f) for f in [("q",0,0),("q",0,1),("q",1,1),("q",0,2),("q",1,2),("q",1,0)]], [])
    winz = [zero(QA + 2 * k) for k in range(8)]
    KVS = 0 if cfg.get("nokv") else 128 * 4096
    kxl = [f"buffer_load_dwordx4 {v(KX+4*n,4)}, {v(vKX)}, {s(sWS,4)}, s{sKVb if n else sKV} offen sc1" for n in range(2)]
    vxl = [f"buffer_load_dwordx4 {v(VX+4*n,4)}, {v(vVX)}, {s(sWS,4)}, s{sKV} offen offset:{2048 + n*128} sc1" for n in range(2)]
    touch = f"buffer_load_dword {v(vTOUCH)}, {v(vTOUCH)}, {s(sWS,4)}, s{sKVt} offen {cfg.get('tfl', 'sc1')}"
    if cfg.get("notouch"): touch = "s_nop 0"
    wint = [f"v_bfe_u32 {v(vTOUCH)}, {v(vL16)}, 4, 5", f"v_lshlrev_b32 {v(vTOUCH)}, 7, {v(vTOUCH)}"]
    kvn = [f"s_add_u32 s{sKV}, s{sKV}, {KVS}", f"s_add_u32 s{sKVb}, s{sKV}, 8192", f"s_add_u32 s{sKVt}, s{sKV}, {w*4096 + KVS}"]
    pub = lastpub = f"buffer_store_dword {v(vLa)}, {v(vPUB)}, {s(sWS,4)}, s{sKVM} offen sc1"
    if cfg.get("nopub"): pub = "s_nop 0"
    QF, KF, SXA, SMA, BX, BM, HLF, OA, LA = L2, L3, QA, QA + 4, KA, KA + 4, KA + 6, L1, L0
    def cnt(r):
        if meas: A(f"s_add_u32 s{r}, s{r}, 1")
    def delay(n):
        while n > 0: A(f"s_nop {min(n,16)-1}"); n -= 16
    def bound(again):
        A(f"s_add_u32 s{sSPIN}, s{sSPIN}, 1"); A(f"s_cmp_lt_u32 s{sSPIN}, {spinmax}"); A(f"s_cbranch_scc1 {again}")
    def need_kv(nm):
        if cfg.get("alone"): return
        A(f"s_bitcmp1_b64 {s(sKM,2)}, s{sT0}"); A(f"s_cbranch_scc0 {lab(nm)}"); A.label(lab(nm + "d"))
    for x in kvn[1:] + win + winz + wint: A(x)
    A(f"s_mov_b32 s{sSPIN}, 0"); A(f"s_mov_b32 s{sTAG}, 0"); A(f"v_mov_b32 {v(vSEN)}, -1")
    A(f"v_mov_b64 {v(ONE,2)}, {s(sONE,2)}"); A(f"v_mov_b64 {v(ONE+2,2)}, {s(sONE,2)}")
    A(f"s_mov_b32 s{sLD2}, {MEM_OFF + w*2048 - X}"); A(f"s_add_u32 s{sST1b}, s{sST1}, 4096")
    A(f"s_lshl_b32 s{sKF}, s{sH}, 8"); A(f"s_add_u32 s{sKF}, s{sKF}, {KVF - (X >> 2)}")
    A(f"s_mov_b32 s{sT0}, 0"); need_kv("kv0"); A(f"s_mov_b32 s{sT0}, 1"); need_kv("kv1")
    for x in kxl + vxl: A(x)
    SL, RA = A0, A0 + 4
    sal = [f"s_add_u32 s{sSTEP}, s{sSTEP}, 1", f"s_and_b32 s{sT0}, s{sSTEP}, 3", f"s_lshl_b32 s{sT0}, s{sT0}, 13", f"s_add_u32 s{sT1}, s{sPUB}, s{sT0}",
           f"s_add_u32 s{sLD2}, s{sT0}, {MEM_OFF + w*2048 - X}", f"s_xor_b32 s{sRS2}, s{sT1}, 16384"]
    sal2 = [f"s_xor_b32 s{sST1}, s{sST1}, {256<<10}", f"s_add_u32 s{sST1b}, s{sST1}, 4096", f"s_add_u32 s{sKVM}, s{sKVM}, 8192",
            f"s_cmp_ge_u32 s{sSTEP}, {NSEG-2}", f"s_cselect_b32 s{sHI}, 0, s{sHI}"] + kvn
    sal2 += [f"s_cmp_ge_u32 s{sSTEP}, {NSEG-2}", f"s_cselect_b32 s{sKVt}, 0x40000000, s{sKVt}",
             f"s_cmp_ge_u32 s{sSTEP}, {NSEG-1}", f"s_cselect_b32 s{sKV}, 0x40000000, s{sKV}", f"s_cselect_b32 s{sKVb}, 0x40000000, s{sKVb}"]
    tail = [f"ds_read_b128 {v(SL,4)}, {v(vL16)} offset:{SEL}"] + sal + sal2
    oth = list(win)
    for x in winz: tail += [x] + oth[:1]; oth = oth[1:]
    tail += oth
    ta, tb = cfg.get("tp", [(0, 99)] * 4)[w]
    assert ta + tb >= 20
    A.wait(vm=0, lg=0)
    A.label(lab("step"))
    ST(0)
    H2 = A0 + 24
    g2 = cfg.get("g2", [[]] * 4)[w]; D2 = len(g2) + 1
    def iss2():
        A.vmq = []
        for n in range(2): A(f"buffer_load_dwordx4 {v(H2+4*n,4)}, {v(vL16)}, {s(sWS,4)}, s{sLD2} offen offset:{n*1024} sc1")
        A.vmq = []
    def use2(after):
        H = H2; q = A.vmq
        wrt = [f"ds_write_b128 {v(vL16)}, {v(H+4*n,4)} offset:{MEMB + (2*w+n)*1024}" for n in range(2)]
        A.wait(vm=after + 1)
        A(f"v_max3_u32 {v(vJ0)}, {v(H)}, {v(H+1)}, {v(H+2)}"); A(f"v_max_u32 {v(vJ0)}, {v(vJ0)}, {v(H+3)}"); A(wrt[0])
        A.wait(vm=after)
        A(f"v_max3_u32 {v(vJ0)}, {v(vJ0)}, {v(H+4)}, {v(H+5)}"); A(f"v_max3_u32 {v(vJ0)}, {v(vJ0)}, {v(H+6)}, {v(H+7)}")
        A(f"v_cmp_eq_u32 vcc, -1, {v(vJ0)}"); A(wrt[1])
    iss2()
    for k, g in enumerate(g2): delay(g); iss2()
    use2(2 * D2 - 2); A(f"s_cbranch_vccnz {lab('r2')}"); A.label(lab("ok2")); ST(1)
    if D2 > 1: A.vmq = [({("v", H2 + r) for r in range(8)}, None, False)]
    A.wait(lg=0); A("s_barrier"); ST(2)
    ar = lambda kk: f"ds_read_b128 {v(A0+4*kk,4)}, {v(vL16)} offset:{MEMB + kk*1024}"
    A(ar(0)); A(ar(1)); A(ar(2))
    def preadd(base, t, ldsoff, tag=None):
        r = base + 4 * t
        return [ad(r, r, r + 2), ad(r + 1, r + 1, r + 3), cv(r, r), (f"ds_write_b32 {v(vKW)}, {v(r)} offset:{ldsoff + t*256}", tag)]
    q0, q1, k0, k1 = preadd(QA, 0, 0), preadd(QA, 1, 0, "q"), preadd(KA, 0, 512), preadd(KA, 1, 512, "k")
    qr = [trr(QF + 4 * m + 2 * t, m, t, 0) for m in range(2) for t in range(2)]
    kr = [trr(KF + 4 * m + 2 * t, m, t, 512) for m in range(2) for t in range(2)]
    sx = [f"v_mfma_f32_16x16x32_bf16 {v(SXA,4)}, {v(KX+4*m,4)}, {v(QF+4*m,4)}, {v(SXA,4) if m else 0}" for m in range(2)]
    ss = [f"v_mfma_f32_16x16x32_bf16 {v(SMA,4)}, {v(KF+4*m,4)}, {v(QF+4*m,4)}, {v(SMA,4) if m else 0}" for m in range(2)]
    vs = [sm("v", t, kk) for t in range(2) for kk in range(8)]
    quad = lambda r: [f"v_add_f32_dpp {v(r+n)}, {v(r+2+n)}, {v(r+n)} quad_perm:[2,3,0,1] row_mask:0xf bank_mask:0xf" for n in range(2)]
    ex = lambda r: [f"v_exp_f32 {v(r+2)}, {v(r)}", f"v_exp_f32 {v(r+3)}, {v(r+1)}"]
    xq, mq = quad(SXA), quad(SMA)
    xe = ex(SXA) + [cv(SXA + 2, SXA + 2), (f"ds_write_b32 {v(vPW)}, {v(SXA+2)}", "p")]
    me = ex(SMA) + [cv(BM, SMA + 2), cv(BM + 1, SMA + 2)]
    ms = [f"v_mul_f32 {v(SMA+r)}, s{sC2}, {v(SMA+r)}" for r in range(2)]
    vc = [cv(VB + n, VA + 2 * n) for n in range(4)]
    bxr = f"ds_read_b128 {v(BX,4)}, {v(vOR)} offset:{PX}"
    mx = [f"v_mfma_f32_16x16x32_bf16 {v(d,4)}, {v(x,4)}, {v(BX,4)}, 0" for d, x in ((LA, ONE), (OA, VX), (OA + 4, VX + 4))]
    mm = [f"v_mfma_f32_16x16x16_bf16 {v(d,4)}, {v(x,2)}, {v(BM,2)}, {v(d,4)}" for d, x in ((LA, HLF), (OA, VB), (OA + 4, VB + 2))]
    z = [zero(A0 + 2 * n) for n in range(8)]
    ow = sum([wr(("o", 3, sl)) for sl in range(4)], [])
    mf = [sm("q", t, kk) for kk in range(4) for t in range(2)] + [sm("q", t, kk) for t in range(2) for kk in range(4, 8)]
    mf += [sm("k", 0, kk) for kk in (3, 0, 1, 4, 2, 5, 6, 7)] + [sm("k", 1, kk) for kk in (3, 4, 5, 6, 7, 0, 1, 2)] + sx + vs[0:10] + ss + vs[10:16]
    slot = {}
    def at(i, x):
        while i in slot: i += 1
        slot[i] = x; return i
    for i in range(5): at(i, [ar(3 + i)])
    at(7, [pw(mf[10])]); at(11, []); at(15, []); at(17, [pw(mf[20])])
    at(16, [q0[3]]); at(20, [q1[3]]); at(24, [bar("q")]); at(25, [qr[0]]); at(26, [qr[1]]); at(27, [qr[2]]); at(28, [qr[3]]); at(29, [k0[3]])
    for e, x in zip(cfg.get("vp", [[-1, 5], [-1, 6], [-1, 8], [-1, 9]])[w], [touch, pub]):
        if e < 0: A(x)
        else: assert at(e, [x]) == e
    for f, e in ((("k",0,0), 5), (("k",0,1), 5), (("k",0,2), 5), (("k",1,0), 6), (("k",1,1), 18), (("k",1,2), 19)):
        for x in wr(f): at(e, [x])
    fill = {i: list(x) for i, x in slot.items()}
    def va(i, *x): fill[i] = fill.get(i, []) + list(x)
    va(1, pw(mf[2], mf[4])); va(5, pw(mf[6])); va(10, pw(mf[11])); va(15, pw(mf[18]))
    for i, e in enumerate((9, 11, 12, 21)): va(e, zero(VA + 2 * i))
    for i in range(3): va(13 + i, q0[i]); va(17 + i, q1[i]); va(26 + i, k0[i])
    va(30, pw(qr[3]))
    va(33, k1[0], k1[1], k1[2]); va(34, k1[3])
    va(35, xq[0]); va(36, ow[0], xq[1]); va(37, xe[0]); va(38, bar("k")); va(39, kr[0], xe[1]); va(40, kr[1], xe[2]); va(41, kr[2], kr[3])
    va(42, xe[3]); va(43, ow[1], f"v_mov_b64 {v(HLF,2)}, {s(sHLF,2)}"); va(44, vc[0]); va(45, vc[1])
    va(46, bar("p")); va(47, bxr, mq[0]); va(48, ow[2], mq[1]); va(49, ow[3], ms[0]); va(50, ow[4], ms[1]); va(51, pw(mx[0]))
    if cfg.get("vmprobe2"): va(31, lambda: ST("pa"), lambda: A.wait(vm=0), lambda: ST("pb"))
    if cfg.get("show"): print(w, {i: len(x) for i, x in sorted(fill.items())})
    weave(mf, fill, "q")
    A.label(lab("sm"))
    A(me[0])
    weave(mx + mm, {0: [me[1]], 1: [me[2], me[3]], 2: [vc[2], vc[3]], 3: [z[0], z[1]], 4: [z[2], z[3]]}, "pv")
    A(f"v_rcp_f32 {v(vLa)}, {v(LA)}")
    A(f"v_subrev_u32 {v(vJ0)}, s{sLO}, {v(LA)}"); A(f"v_cmp_le_u32 vcc, s{sHI}, {v(vJ0)}")
    OF = A0 + 16
    pm = lambda r: f"v_pk_mul_f32 {v(r,2)}, {v(r,2)}, {v(vLa,2)} op_sel_hi:[1,0]"
    A(pm(OA)); A(pm(OA + 2)); A(cv(OF, OA)); A(cv(OF + 1, OA + 2))
    A(pm(OA + 4)); A(pm(OA + 6)); A(f"ds_write_b64 {v(vL16)}, {v(OF,2)} offset:{OX + w*1024}")
    A(cv(OF + 2, OA + 4)); A(cv(OF + 3, OA + 6)); A(f"ds_write_b64 {v(vL16)}, {v(OF+2,2)} offset:{OX + w*1024 + 8}")
    ST("ow")
    wo = lambda i, sl: f"v_smfmac_f32_16x16x64_bf16 {v(A0+4*i,4)}, {v(OF+4*sl,4)}, {W(('o',i,sl))}, {v(vIDX)}"
    orr = [f"ds_read_b128 {v(OF+4*sl,4)}, {v(vOR)} offset:{OX + ((w+sl)&3)*1024}" for sl in range(4)]
    H1 = [A0 + 24, A0 + 8]
    A(f"s_and_b64 vcc, vcc, {s(sMSK,2)}")
    for r in range(4): A(f"v_mov_b32_dpp {v(OF+r)}, {v(OF+r)} quad_perm:[0,1,0,1] row_mask:0xf bank_mask:0xf")
    A(f"s_cbranch_scc1 {lab('mx')}")
    A.label(lab("mxd"))
    if cfg.get("vmprobe"): ST("pa"); A.wait(vm=0); ST("pb")
    A(z[4]); A(wo(0, 0))
    A.wait(lg=0); A("s_barrier"); ST("obar")
    A(orr[1])
    mf = [wo(1, 0), wo(2, 0), wo(3, 0)] + [wo(i, sl) for i in range(4) for sl in range(1, 4)]
    def iss1(k):
        for n in range(2): A(f"buffer_load_dwordx4 {v(H1[k]+4*n,4)}, {v(vL16)}, {s(sWS,4)}, s{sLD1} offen offset:{n*1024} sc1")
    def out(i):
        r = A0 + 4 * i
        return [cv(r, r), cv(r + 1, r + 2), f"v_and_or_b32 {v(r)}, {v(r)}, -2, s{sTAG}",
                f"buffer_store_dwordx2 {v(r,2)}, {v(vS1)}, {s(sWS,4)}, s{sST1b if i>>1 else sST1} offen offset:{(i&1)*2048} {sc}"]
    o0, o1, o2, o3 = [out(i) for i in range(4)]
    A(z[5]); A(z[6])
    e0 = cfg.get("e0", 6)
    fill = {0: [orr[2], z[7]], 1: [orr[3]], 2: [ow[5]], 3: [ow[6]], 4: [ow[7]], e0: o0, 10: o1, 11: [pw(mf[14])], 13: o2}
    weave(mf, fill, "o")
    for x in o3: A(x)
    ST(7)
    for x in tail[:ta]: A(x)
    x1 = cfg.get("x1", [[0]] * 4)[w]; D1 = len(x1)
    for k, n in enumerate(x1):
        delay(n)
        if k == 0: ST("i1")
        iss1(k)
    for x in tail[ta:ta + tb]: A(x)
    if cfg.get("trace"):
        A.wait(lg=0)
        for n in range(8): A(f"v_writelane_b32 {v(vLa)}, s{70+2*n}, {n}")
        A(f"s_lshl_b32 s{sT0}, s{sH}, 6"); A(f"s_add_u32 s{sT0}, s{sT0}, s{sSTEP}"); A(f"s_lshl_b32 s{sT0}, s{sT0}, 10"); A(f"s_add_u32 s{sT0}, s{sT0}, {(201 << 20) + w*256 - (X >> 2)}")
        A(f"v_lshrrev_b32 {v(vJ0)}, 2, {v(vL16)}"); A(f"buffer_store_dword {v(vLa)}, {v(vJ0)}, {s(sWS,4)}, s{sT0} offen")
    A.prewait(f"v_mov_b64 {v(SL,2)}, {v(SL,2)}")
    def use1(k):
        H = H1[k]
        A(f"v_mfma_f32_16x16x32_bf16 {v(RA,4)}, {v(SL,4)}, {v(H,4)}, 0")
        A(f"v_bitop3_b32 {v(vJ0)}, {v(H)}, {v(H+2)}, s{sTAG} bitop3:0x7e")
        A(f"v_mfma_f32_16x16x32_bf16 {v(RA,4)}, {v(SL,4)}, {v(H+4,4)}, {v(RA,4)}")
        A(f"v_bitop3_b32 {v(vLb)}, {v(H+4)}, {v(H+6)}, s{sTAG} bitop3:0x7e")
        A(f"v_bitop3_b32 {v(vJ0)}, {v(vJ0)}, {v(vLb)}, 1 bitop3:0xa8")
        A(f"v_cmp_ne_u32 vcc, 0, {v(vJ0)}")
        for x in red(4): A(x)
    red = lambda rr: [f"v_add_f32_dpp {v(RA+r)}, {v(RA+r)}, {v(RA+r)} row_ror:{rr} row_mask:0xf bank_mask:0xf" for r in range(2)]
    use1(0)
    A(f"s_cbranch_vccnz {lab('r1')}"); A.label(lab("ok1")); ST("ok1")
    for x in red(8): A(x)
    A(cv(vLa, RA))
    A(f"buffer_store_dword {v(vLa)}, {v(vPUB)}, {s(sWS,4)}, s{sT1} offen {sc}")
    ST(8)
    A(f"buffer_store_dword {v(vSEN)}, {v(vPUB)}, {s(sWS,4)}, s{sRS2} offen {sc}")
    delay(cfg.get("kd", [0] * 4)[w])
    for x in kxl + vxl + wint + [f"s_xor_b32 s{sLD1}, s{sLD1}, {256<<10}", f"s_bfe_u32 s{sTAG}, s{sSTEP}, 0x10001"] + tail[ta + tb:]: A(x)
    A(f"s_add_u32 s{sT0}, s{sSTEP}, 1"); need_kv("kv2")
    if meas: A(f"s_cmp_eq_u32 s{sSTEP}, 8"); A(f"s_cbranch_scc1 {lab('m8')}"); A.label(lab("m8d"))
    delay(cfg.get("d2", [0] * 4)[w])
    A(f"s_branch {lab('step')}")
    if meas:
        A.forget(); A.label(lab("m8")); A("s_memtime s[64:65]", tag="stamp"); A("s_memrealtime s[60:61]", tag="stamp")
        A("s_mov_b32 s99, 0"); A("s_mov_b32 s101, 0"); A("s_mov_b32 s100, 0"); A(f"s_branch {lab('m8d')}")
    for nm in ([] if cfg.get("alone") else ["kv0", "kv1", "kv2"]):
        A.forget(); A.label(lab(nm))
        A(f"v_lshrrev_b32 {v(vJ0)}, 2, {v(vL16)}"); A(f"buffer_load_dword {v(vJ0)}, {v(vJ0)}, {s(sWS,4)}, s{sKF} offen sc1")
        A(f"v_cmp_eq_u32 {s(sKM,2)}, 1, {v(vJ0)}"); A("s_nop 4")
        A(f"s_bitcmp1_b64 {s(sKM,2)}, s{sT0}"); A(f"s_cbranch_scc1 {lab(nm + 'd')}")
        bound(lab(nm)); A(f"s_branch {lab(nm + 'd')}")
    A.forget(); A.label(lab("r2"))
    for k in range(2):
        iss2(); cnt(99); use2(2 * D2 - 2); A(f"s_cbranch_vccz {lab('ok2')}")
    bound(lab("r2")); A(f"s_mov_b32 s{sGIVE}, 1"); A(f"s_branch {lab('ok2')}")
    A.forget(); A.label(lab("r1"))
    A.vmq = [({("v", H1[k] + 4 * n + r) for r in range(4)}, None, False) for k in range(1, D1) for n in range(2)]
    for k in range(D1):
        cnt(100); iss1(k); use1((k + 1) % D1); A(f"s_cbranch_vccz {lab('ok1')}")
    bound(lab("r1")); A(f"s_mov_b32 s{sGIVE}, 1"); A.wait(vm=0); A(f"s_branch {lab('ok1')}")
    A.forget(); A.label(lab("mx"))
    A("s_nop 7")
    A(f"s_cmp_lg_u32 s{sHI}, 0"); A(f"s_cbranch_scc1 {lab('mx2')}")
    PK = OF + 8
    A(trr(PK, w >> 1, w & 1, 512)); A(pk(PK + 4, VA, VA + 2)); A(pk(PK + 6, VA + 4, VA + 6)); A(cv(PK + 2, PK + 4)); A(cv(PK + 3, PK + 6))
    A(f"s_and_b32 s{sT0}, s{sSTEP}, 1"); A(f"s_lshl_b32 s{sT0}, s{sT0}, 5"); A(f"s_add_u32 s{sT0}, s{sT0}, s{sH}"); A(f"s_lshl_b32 s{sT0}, s{sT0}, 12"); A(f"s_add_u32 s{sT0}, s{sT0}, {KVD_OFF + w*1024 - X}")
    A(f"buffer_store_dwordx4 {v(PK,4)}, {v(vL16)}, {s(sWS,4)}, s{sT0} offen sc1")
    A(f"s_cmp_eq_u32 s{sSTEP}, {NSEG-1}"); A(f"s_cbranch_scc1 {lab('end')}")
    A(f"s_mov_b32 s{sHI}, {120<<23:#x}"); A(f"v_cmp_le_u32 vcc, s{sHI}, {v(vJ0)}"); A("s_nop 4"); A(f"s_and_b64 vcc, vcc, {s(sMSK,2)}"); A(f"s_cbranch_scc0 {lab('mxd')}")
    A.label(lab("mx2"))
    A(f"v_max3_f32 {v(vLa)}, {v(SXA)}, {v(SXA+1)}, {v(SMA)}"); A(f"v_max_f32 {v(vLa)}, {v(vLa)}, {v(SMA+1)}"); A(f"v_mov_b32 {v(vLb)}, {v(vLa)}")
    A(f"v_permlane16_swap_b32 {v(vLa)}, {v(vLb)}"); A(f"v_max_f32 {v(vLa)}, {v(vLa)}, {v(vLb)}"); A(f"v_mov_b32 {v(vLb)}, {v(vLa)}")
    A(f"v_permlane32_swap_b32 {v(vLa)}, {v(vLb)}"); A(f"v_max_f32 {v(vLa)}, {v(vLa)}, {v(vLb)}")
    A(f"ds_write_b32 {v(vL16)}, {v(vLa)} offset:{MXB + 4*w}"); A.wait(lg=0); A("s_barrier")
    A(f"ds_read_b128 {v(LA,4)}, {v(vL16)} offset:{MXB}")
    A(f"v_max3_f32 {v(vLa)}, {v(LA)}, {v(LA+1)}, {v(LA+2)}"); A(f"v_max_f32 {v(vLa)}, {v(vLa)}, {v(LA+3)}")
    A(f"v_cmp_neq_f32 vcc, 0, {v(vLa)}")
    A(f"v_mov_b32 {v(vJ0)}, 0x1f8")
    A(f"v_cmp_class_f32 s[36:37], {v(vLa)}, {v(vJ0)}")
    A("s_nop 4"); A("s_and_b64 vcc, vcc, s[36:37]"); A(f"s_and_b64 vcc, vcc, {s(sMSK,2)}")
    A(f"s_cbranch_scc0 {lab('mxd')}")
    A(f"v_cndmask_b32 {v(vLa)}, 0, {v(vLa)}, vcc")
    for r in (SXA, SXA + 1, SMA, SMA + 1): A(f"v_sub_f32 {v(r)}, {v(r)}, {v(vLa)}")
    for x in xe: put(x)
    A.wait(lg=0); A("s_barrier"); A(bxr); A.wait(lg=0)
    A(f"s_branch {lab('sm')}")
    A.forget(); A.label(lab("end"))

def arrive(A, w):
    if w == 0:
        A("s_getreg_b32 s36, hwreg(HW_REG_XCC_ID, 0, 3)"); A("s_lshl_b32 s36, s36, 3"); A("s_lshl_b64 s[36:37], 1, s36")
        A("v_mov_b32 v116, s36"); A("v_mov_b32 v117, s37"); A("v_mov_b32 v118, 0")
        A("s_mov_b64 exec, 1"); A("global_atomic_add_x2 v118, v[116:117], s[6:7]"); A("s_mov_b64 exec, -1")

def meet(A, w, cfg):
    sm = cfg.get("spin", 100000)
    A(f"s_mov_b32 s{sSPIN}, 0"); A("v_mov_b32 v118, 0"); A(f"s_mov_b64 {s(sKM,2)}, 0")
    A("s_getreg_b32 s36, hwreg(HW_REG_XCC_ID, 0, 3)"); A("s_lshl_b32 s36, s36, 3"); A("s_lshl_b64 s[36:37], 32, s36")
    if not cfg.get("alone"):
        A("v_and_b32 v114, v114, v115"); A("v_cmp_ne_u32 vcc, -1, v114"); A(f"s_cbranch_vccnz Tln_{w}")
        A(f"v_cmp_eq_u32 {s(sKM,2)}, 1, {v(vJ0)}"); A(f"s_branch Tmeet2_{w}")
        A.label(f"Tln_{w}")
        A("global_load_dwordx2 v[116:117], v118, s[6:7] offset:128 sc1"); A("v_and_b32 v116, v116, v117"); A("v_cmp_ne_u32 vcc, -1, v116"); A(f"s_cbranch_vccz Tmeet_{w}")
        A(f"s_add_u32 s{sSPIN}, s{sSPIN}, 1"); A(f"s_cmp_lt_u32 s{sSPIN}, {sm}"); A(f"s_cbranch_scc1 Tln_{w}")
    A.label(f"Tmeet_{w}")
    A("global_load_dwordx2 v[116:117], v118, s[6:7] sc1")
    A.label(f"Tmeet2_{w}")
    A("v_sad_u8 v119, v116, 0, 0"); A("v_sad_u8 v119, v117, 0, v119")
    A("v_readfirstlane_b32 s38, v116"); A("v_readfirstlane_b32 s39, v117"); A("v_readfirstlane_b32 s40, v119")
    A("s_nop 3")
    if not cfg.get("force_slow"):
        A("s_cmp_eq_u64 s[36:37], s[38:39]"); A(f"s_cbranch_scc1 Tfast_{w}")
    A("s_cmp_eq_u32 s40, 32"); A(f"s_cbranch_scc1 Tslow_{w}")
    A(f"s_add_u32 s{sSPIN}, s{sSPIN}, 1"); A(f"s_cmp_lt_u32 s{sSPIN}, {sm}"); A(f"s_cbranch_scc1 Tmeet_{w}")
    A(f"s_branch Tslow_{w}")

def team(A, cfg, fin):
    global ORDER
    ORDER = cfg.get("order", "qkvo")
    cfg = dict(cfg); cfg["arrive"] = arrive
    for w in range(1, 4):
        A(f"s_cmp_eq_u32 s17, {w}"); A(f"s_cbranch_scc1 Twave_{w}")
    for w in range(4):
        A.forget(); A.label(f"Twave_{w}")
        prologue(A, w, cfg); meet(A, w, cfg)
        if cfg.get("noslow"): A.label(f"Tslow_{w}")
        for sc, nm in (("", "fast"), ("sc1", "slow"))[:1 if cfg.get("noslow") else 2]:
            A.forget(); A.label(f"T{nm}_{w}")
            if cfg.get("meas", True): A("s_memrealtime s[66:67]", tag="stamp")
            loop(A, w, cfg, sc); fin(A, w)
```

```python
from gen import *
import struct
from team import KV_OFF, KVM_OFF, MEMG_OFF, KVD_OFF, CSC, X

XN_OFF, Y_OFF, FLG_OFF, PART_OFF = 52 << 20, 54 << 20, 56 << 20, 64 << 20
KVF, MF, HF, AF = FLG_OFF, FLG_OFF + 8192, FLG_OFF + 24576, FLG_OFF + 32768
CHUNK = 48 * 1024; SEGP = 32 * CHUNK
EXC, KVL, KXL = 65536, 81920, 86016
OOB = 0x40000000
fb = lambda x: "0x%08x" % struct.unpack("<I", struct.pack("<f", x))[0]
LOG2E = 1.4426950408889634

sWS = 8
sU, sWV, sH, sT, sSEG, sSPIN, sA, sB, sC, sM0, sBUF, sPREV, sSRC, sEND, sD, sE = range(16, 32)
sW1, sW2, sXR, sOUT = 32, 36, 40, 44
sF = 56
sLN = 48
vL, vL16, vST, vTRA, vS1, vS2, vKA, vRD, vXO, vZ, vT0, vT1, vT2, vT3, vKM, vVM = range(0, 16)
AC1, AC2, BR, KF, VF, MSK, SMA, KM, G2, MS = 16, 32, 48, 80, 112, 120, 136, 152, 184, 216
SEL, GA, RA, XV, VM, PM, B2 = 216, 220, 224, 228, 232, 236, 230

def bits(A, dst, terms, const=0):
    A(f"v_mov_b32 {v(dst)}, {const}")
    for (b, n, sh) in terms:
        A(f"v_bfe_u32 {v(vT0)}, {v(vL)}, {b}, {n}"); A(f"v_lshl_add_u32 {v(dst)}, {v(vT0)}, {sh}, {v(dst)}")

def srd(A, r, arg, nbytes):
    A(f"s_load_dwordx2 {s(r,2)}, s[0:1], {arg}"); A(f"s_mov_b32 s{r+2}, {nbytes}"); A(f"s_mov_b32 s{r+3}, 0x20000")

def spin(A, again, cfg):
    A(f"s_add_u32 s{sSPIN}, s{sSPIN}, 1"); A(f"s_cmp_lt_u32 s{sSPIN}, {cfg.get('spin', 100000)}"); A(f"s_cbranch_scc1 {again}")

def layer_norm(A, cfg):
    R, F = 16, 64
    bits(A, vT2, [(0, 3, 10), (3, 3, 4)]); bits(A, vT3, [(0, 3, 4), (3, 3, 9)])
    A(f"s_lshl_b32 s{sA}, s{sSEG}, 15"); A(f"s_lshl_b32 s{sB}, s{sWV}, 13"); A(f"s_add_u32 s{sB}, s{sA}, s{sB}")
    for i in range(8): A(f"buffer_load_dwordx4 {v(R+4*i,4)}, {v(vT2)}, {s(sXR,4)}, s{sB} offen offset:{i*128}")
    A(f"s_lshl_b32 s{sB}, s{sWV}, 7"); A(f"s_add_u32 s{sB}, s{sA}, s{sB}")
    A(f"v_and_b32 {v(vT0)}, 31, {v(vL)}"); A(f"v_lshlrev_b32 {v(vT1)}, 8, {v(vT0)}"); A(f"v_lshlrev_b32 {v(vT0)}, 2, {v(vT0)}")
    A(f"s_lshl_b32 s{sC}, s{sSEG}, 2"); A(f"s_add_u32 s{sC}, s{sC}, {KVF}"); A(f"buffer_store_dword {v(vZ)}, {v(vT1)}, {s(sWS,4)}, s{sC} offen sc1")
    A(f"s_lshl_b32 s{sC}, s{sSEG}, 7"); A(f"s_add_u32 s{sC}, s{sC}, {MF}"); A(f"buffer_store_dword {v(vZ)}, {v(vT0)}, {s(sWS,4)}, s{sC} offen sc1")
    for r in range(4): A(f"v_mov_b32 {v(F+4+r)}, 0")
    A(f"s_lshl_b32 s{sC}, s{sSEG}, 12"); A(f"s_lshl_b32 s{sD}, s{sWV}, 10"); A(f"s_add_u32 s{sE}, s{sC}, s{sD}"); A(f"s_add_u32 s{sC}, s{sE}, {AF}")
    A(f"buffer_store_dwordx4 {v(F+4,4)}, {v(vL16)}, {s(sWS,4)}, s{sC} offen sc1")
    A(f"s_lshl_b32 s{sC}, s{sSEG}, 2"); A(f"s_add_u32 s{sC}, s{sC}, {HF}"); A(f"buffer_store_dword {v(vZ)}, {v(vT1)}, {s(sWS,4)}, s{sC} offen sc1")
    for r in range(4): A(f"v_mov_b32 {v(F+r)}, -1")
    A(f"s_lshl_b32 s{sC}, s{sSEG}, 13"); A(f"s_lshl_b32 s{sD}, s{sWV}, 11"); A(f"s_add_u32 s{sC}, s{sC}, s{sD}"); A(f"s_add_u32 s{sC}, s{sC}, {MEMG_OFF}")
    for n in range(2): A(f"buffer_store_dwordx4 {v(F,4)}, {v(vL16)}, {s(sWS,4)}, s{sC} offen offset:{n*1024} sc1")
    A(f"s_add_u32 s{sC}, s{sE}, {KVD_OFF}"); A(f"buffer_store_dwordx4 {v(F,4)}, {v(vL16)}, {s(sWS,4)}, s{sC} offen sc1")
    P, Q = 130, 132
    def allred():
        A(f"v_add_f32 {v(P)}, {v(P)}, {v(P+1)}")
        A(f"v_add_f32_dpp {v(P)}, {v(P)}, {v(P)} row_ror:8 row_mask:0xf bank_mask:0xf")
        for op in ("16", "32"):
            A(f"v_mov_b32 {v(P+1)}, {v(P)}"); A(f"v_permlane{op}_swap_b32 {v(P)}, {v(P+1)}"); A(f"v_add_f32 {v(P)}, {v(P)}, {v(P+1)}")
    for dst in (XN_OFF, Y_OFF):
        for i in range(32):
            A(f"v_lshlrev_b32 {v(F+2*i)}, 16, {v(R+i)}"); A(f"v_and_b32 {v(F+2*i+1)}, 0xffff0000, {v(R+i)}")
        A(f"v_pk_add_f32 {v(P,2)}, {v(F,2)}, {v(F+2,2)}")
        for i in range(2, 32): A(f"v_pk_add_f32 {v(P,2)}, {v(P,2)}, {v(F+2*i,2)}")
        allred(); A(f"v_mul_f32 {v(Q)}, {fb(-1/512)}, {v(P)}")
        for i in range(32): A(f"v_pk_add_f32 {v(F+2*i,2)}, {v(F+2*i,2)}, {v(Q,2)} op_sel_hi:[1,0]")
        A(f"v_pk_mul_f32 {v(P,2)}, {v(F,2)}, {v(F,2)}")
        for i in range(1, 32): A(f"v_pk_fma_f32 {v(P,2)}, {v(F+2*i,2)}, {v(F+2*i,2)}, {v(P,2)}")
        allred(); A(f"v_mov_b32 {v(Q)}, {fb(1e-5)}"); A(f"v_fmac_f32 {v(Q)}, {fb(1/512)}, {v(P)}"); A(f"v_rsq_f32 {v(Q)}, {v(Q)}")
        A(f"s_add_u32 s{sC}, s{sB}, {dst}")
        for i in range(32):
            A(f"v_pk_mul_f32 {v(F+2*i,2)}, {v(F+2*i,2)}, {v(Q,2)} op_sel_hi:[1,0]"); A(f"v_cvt_pk_bf16_f32 {v(R+i)}, {v(F+2*i)}, {v(F+2*i+1)}")
            if i % 4 == 3:
                A(f"buffer_store_dwordx4 {v(R+i-3,4)}, {v(vT3)}, {s(sWS,4)}, s{sC} offen sc1"); A(f"s_add_u32 s{sC}, s{sC}, 4096")
    A.wait(vm=0); A("s_barrier")
    A(f"s_lshl_b64 {s(sD,2)}, 1, s{sSEG}"); A(f"v_mov_b32 {v(R)}, s{sD}"); A(f"v_mov_b32 {v(R+1)}, s{sE}")
    A(f"s_cmp_lg_u32 s{sWV}, 0"); A("s_cbranch_scc1 Wln_done")
    A("s_mov_b64 exec, 1"); A(f"global_atomic_or_x2 {v(vZ)}, {v(R,2)}, s[6:7] offset:128"); A("s_mov_b64 exec, -1")

def load_weights(A, kinds):
    SRC, TN, TK = 244, 246, 248
    A(f"v_lshrrev_b32 {v(vT1)}, 4, {v(vL)}"); A(f"v_lshlrev_b32 {v(vT2)}, 2, {v(vT1)}"); A(f"v_xor_b32 {v(vT2)}, {v(vT2)}, {v(vL)}"); A(f"v_and_b32 {v(vT2)}, 15, {v(vT2)}")
    for half, kd in enumerate(kinds):
        A(f"v_mul_u32_u24 {v(SRC+half)}, {kd[3] if kd[0] == 'n' else 1024}, {v(vT1)}"); A(f"v_lshl_add_u32 {v(SRC+half)}, {v(vT2)}, 4, {v(SRC+half)}")
        if kd[0] == "n": A(f"s_mul_i32 s{sA}, s{sWV}, {16*kd[3]}"); A(f"v_add_u32 {v(SRC+half)}, s{sA}, {v(SRC+half)}")
    def dma(i):
        kd, un = kinds[i >> 3], i & 7
        for n in range(4):
            so = (64 * un + 4 * n) * kd[3] if kd[0] == "n" else (16 * un + 8 * (n & 1) + 4 * (n >> 1)) * 1024
            A(f"s_add_u32 m0, s{sM0}, {un*4096 + n*1024}"); A(f"s_add_u32 s{sA}, s{kd[2]}, {so}")
            A(f"buffer_load_dwordx4 {v(SRC + (i >> 3))}, {s(kd[1],4)}, s{sA} offen lds", tag=("u", i))
    LA = 5
    A("s_barrier")
    for i in range(LA): dma(i)
    bits(A, TK, [(5, 1, 11), (2, 2, 8), (2, 2, 6), (4, 1, 5), (0, 2, 3)])
    A(f"s_lshl_b32 s{sA}, s{sWV}, 6"); A(f"v_xor_b32 {v(TN)}, s{sA}, {v(TK)}"); A(f"v_add_u32 {v(TN+1)}, 65536, {v(TN)}")
    A(f"v_add_u32 {v(TK)}, s{sM0}, {v(TK)}")
    for ct in range(1, 4): A(f"v_xor_b32 {v(TK+ct)}, {64*ct}, {v(TK)}")
    for i in range(16):
        kd, un = kinds[i >> 3], i & 7
        A.wait_tag(("u", i)); A.wait(lg=0); A("s_barrier")
        for n in range(4):
            for p in range(2):
                if kd[0] == "n": A(f"ds_read_b64_tr_b16 {a(128*(i >> 3) + 16*un + 4*n + 2*p, 2)}, {v(TN + (n >> 1))} offset:{(n & 1)*32768 + un*4096 + p*1024}")
                else: A(f"ds_read_b64_tr_b16 {a(128 + 32*n + 4*un + 2*p, 2)}, {v(TK+n)} offset:{un*4096 + p*1024}")
        if i + LA < 16: dma(i + LA)
    A.wait(lg=0); A("s_barrier")

def need_ln(A, cfg, nm, sseg):
    A(f"s_bitcmp1_b64 {s(sLN,2)}, s{sseg}"); A(f"s_cbranch_scc1 {nm}_ok")
    A.label(f"{nm}_poll")
    A(f"global_load_dwordx2 {v(vT0,2)}, {v(vZ)}, s[6:7] offset:128 sc1")
    A(f"v_readfirstlane_b32 s{sLN}, {v(vT0)}"); A(f"v_readfirstlane_b32 s{sLN+1}, {v(vT1)}"); A("s_nop 3")
    A(f"s_bitcmp1_b64 {s(sLN,2)}, s{sseg}"); A(f"s_cbranch_scc1 {nm}_ok")
    spin(A, f"{nm}_poll", cfg)
    A.label(f"{nm}_ok")

def act_dma(A, off, sseg, sbuf):
    A(f"s_lshl_b32 s{sA}, s{sseg}, 15"); A(f"s_lshl_b32 s{sB}, s{sWV}, 13"); A(f"s_add_u32 s{sA}, s{sA}, s{sB}"); A(f"s_add_u32 s{sA}, s{sA}, {off}")
    A(f"s_add_u32 s{sB}, s{sB}, s{sbuf}")
    for hf in range(2):
        A(f"s_add_u32 m0, s{sB}, {hf*4096}"); A(f"s_add_u32 s{sC}, s{sA}, {hf*4096}")
        for n in range(4): A(f"buffer_load_dwordx4 {v(vL16)}, {s(sWS,4)}, s{sC} offen offset:{n*1024} sc1 lds", tag="act")

def gemm1(A, two, c0="0"):
    A(f"v_add_u32 {v(vT2)}, s{sBUF}, {v(vL16)}")
    rd = lambda k: f"ds_read_b128 {v(BR+4*(k % 8),4)}, {v(vT2)} offset:{k*1024}"
    for k in range(6): A(rd(k))
    for k in range(32):
        b = v(BR + 4 * (k % 8), 4)
        A(f"v_mfma_f32_32x32x16_bf16 {v(AC1,16)}, {a(4*k,4)}, {b}, {v(AC1,16) if k else c0}")
        if k + 6 < 32: A(rd(k + 6))
        if two: A(f"v_mfma_f32_32x32x16_bf16 {v(AC2,16)}, {b}, {a(128+4*k,4)}, {v(AC2,16) if k else 0}")

def pack(A, dst, src):
    for i in range(8): A(f"v_cvt_pk_bf16_f32 {v(dst+i)}, {v(src+2*i)}, {v(src+2*i+1)}")

def exchange(A, src, drain=None, buf=0):
    A(f"s_lshl_b32 s{sA}, s{sWV}, 11"); A(f"v_add_u32 {v(vT2)}, s{sA}, {v(vRD)}")
    for ap in range(2): A(f"ds_write_b128 {v(vT2)}, {v(src+4*ap,4)} offset:{buf + ap*1024}")
    if drain: A.wait(vm=0, lg=0)
    else: A.wait(lg=0)
    A("s_barrier")
    for k in range(8): A(f"ds_read_b128 {v(BR+4*k,4)}, {v(vRD)} offset:{buf + k*1024}")
    if drain: drain()

def gemm2(A):
    A(f"s_mul_i32 s{sA}, s{sSEG}, {SEGP}"); A(f"s_mul_i32 s{sB}, s{sWV}, {8*CHUNK}"); A(f"s_add_u32 s{sA}, s{sA}, s{sB}")
    A(f"s_lshl_b32 s{sB}, s{sSRC}, 10"); A(f"s_add_u32 s{sA}, s{sA}, s{sB}"); A(f"s_add_u32 s{sA}, s{sA}, {PART_OFF}")
    def out(ct):
        r = G2 + 16 * (ct & 1); o = []
        for ap in range(2):
            o += [f"v_cvt_pk_bf16_f32 {v(r+8*ap+i)}, {v(r+8*ap+2*i)}, {v(r+8*ap+2*i+1)}" for i in range(4)]
            o += [f"buffer_store_dwordx4 {v(r+8*ap,4)}, {v(vST)}, {s(sWS,4)}, s{sA} offen offset:{(2*ct+ap)*128} sc1"]
        return o
    for ct in range(4):
        r = v(G2 + 16 * (ct & 1), 16); pend = out(ct - 1) if ct else []
        for k in range(8):
            A(f"v_mfma_f32_32x32x16_bf16 {r}, {a(128+32*ct+4*k,4)}, {v(BR+4*k,4)}, {r if k else 0}")
            if k in (2, 4):
                for x in pend[:5]: A(x)
                pend = pend[5:]
    for x in out(3): A(x)

def flag(A, base, shift_seg, sidx, sh, fan=None):
    nm = A.newlabel("Wf")
    A(f"s_lshr_b32 s{sA}, s{sPREV}, 31"); A(f"s_or_b32 s{sA}, s{sA}, s{sWV}"); A(f"s_cbranch_scc1 {nm}")
    A(f"s_lshl_b32 s{sA}, s{sPREV}, {shift_seg}"); A(f"s_lshl_b32 s{sB}, s{sidx}, {sh}"); A(f"s_add_u32 s{sA}, s{sA}, s{sB}"); A(f"s_add_u32 s{sA}, s{sA}, {base}")
    A(f"v_mov_b32 {v(vT0)}, 1")
    if fan: A(f"v_lshlrev_b32 {v(vT1)}, 7, {v(vL)}"); A("s_mov_b64 exec, 0xffffffff"); A(f"buffer_store_dword {v(vT0)}, {v(vT1)}, {s(sWS,4)}, s{sA} offen sc1")
    else: A("s_mov_b64 exec, 1"); A(f"buffer_store_dword {v(vT0)}, off, {s(sWS,4)}, s{sA} sc1")
    A("s_mov_b64 exec, -1")
    A.label(nm); A.vmq = []

def poll(A, cfg, addr, sbase, dst=vT0):
    nm = A.newlabel("Wp")
    A.label(nm)
    A(f"buffer_load_dword {v(dst)}, {v(addr) if addr is not None else 'off'}, {s(sWS,4)}, s{sbase} {'offen ' if addr is not None else ''}sc1")
    A(f"v_cmp_ne_u32 vcc, 1, {v(dst)}"); A(f"s_cbranch_vccz {nm}_ok")
    spin(A, nm, cfg)
    A.label(f"{nm}_ok")

def seg_loop(A, cfg, nm, off, step, body, fl):
    A(f"s_mov_b32 s{sBUF}, 0"); A(f"s_mov_b32 s{sPREV}, -1"); need_ln(A, cfg, nm + "_l0", sSEG); act_dma(A, off, sSEG, sBUF)
    A.wait(vm=0); A("s_barrier")
    A.label(nm + "_top")
    A(f"s_add_u32 s{sD}, s{sSEG}, {step}"); A(f"s_cmp_ge_u32 s{sD}, s{sEND}"); A(f"s_cbranch_scc1 {nm}_nn")
    need_ln(A, cfg, nm + "_l1", sD); A(f"s_xor_b32 s{sE}, s{sBUF}, 32768"); act_dma(A, off, sD, sE)
    A.label(nm + "_nn"); A.vmq = []
    body()
    A(f"s_mov_b32 s{sPREV}, s{sSEG}")
    A(f"s_xor_b32 s{sBUF}, s{sBUF}, 32768"); A(f"s_add_u32 s{sSEG}, s{sSEG}, {step}"); A(f"s_cmp_lt_u32 s{sSEG}, s{sEND}"); A(f"s_cbranch_scc1 {nm}_top")
    A.wait(vm=0); A("s_barrier")
    fl()

def worker(A, cfg):
    def TS(n):
        if cfg.get("wstamp"): A(f"s_memrealtime s[{70+2*n}:{71+2*n}]", tag="stamp")
    def TT(n):
        if cfg.get("wstamp"): A(f"s_memrealtime s[{84+2*n}:{85+2*n}]", tag="stamp")
    srd(A, sXR, 0, 2097152); srd(A, sOUT, 96, 2097152); srd(A, sW1, 24, 4194304); srd(A, sW2, 32, 4194304)
    A("s_load_dwordx2 s[52:53], s[0:1], 16"); A("s_load_dwordx2 s[54:55], s[0:1], 40")
    A(f"v_and_b32 {v(vL)}, 63, v0"); A(f"v_mov_b32 {v(vZ)}, 0"); A(f"v_lshlrev_b32 {v(vL16)}, 4, {v(vL)}")
    A(f"s_mov_b32 s{sSPIN}, 0"); A(f"s_mov_b64 {s(sLN,2)}, 0"); A(f"s_lshl_b32 s{sM0}, s{sWV}, 15")
    A(f"s_mul_i32 s{sH}, s{sU}, 9363"); A(f"s_lshr_b32 s{sH}, s{sH}, 16"); A(f"s_mul_i32 s{sT}, s{sH}, 7"); A(f"s_sub_u32 s{sT}, s{sU}, s{sT}")
    A.wait(lg=0)
    A(f"s_cmp_ge_u32 s{sT}, 5"); A("s_cbranch_scc1 Wln")
    if cfg.get("wtouch", True):
        A(f"s_cmp_eq_u32 s{sT}, 0"); A("s_cbranch_scc1 Wln_done")
        A(f"s_sub_u32 s{sA}, s{sT}, 1"); A(f"s_lshl_b32 s{sA}, s{sA}, 2"); A(f"s_add_u32 s{sA}, s{sA}, s{sWV}")
        bits(A, vT2, [(1, 5, 13), (0, 1, 7)]); A(f"s_lshl_b32 s{sB}, s{sA}, 18"); A(f"s_lshl_b32 s{sC}, s{sH}, 8"); A(f"s_add_u32 s{sB}, s{sB}, s{sC}"); A(f"v_add_u32 {v(vT2)}, s{sB}, {v(vT2)}")
        A(f"s_lshl_b32 s{sB}, s{sA}, 13"); A(f"s_lshl_b32 s{sC}, s{sH}, 17"); A(f"s_add_u32 s{sB}, s{sB}, s{sC}"); A(f"v_lshl_add_u32 {v(vT3)}, {v(vL)}, 7, s{sB}")
        for k, m in enumerate(cfg.get("torder", "qkvo")): A(f"global_load_dword {v(240+k)}, {v(vT3 if m == 'o' else vT2)}, {s(dict(q=52, k=sW1, v=sW2, o=54)[m],2)}")
    A("s_branch Wln_done")
    A.forget(); A.label("Wln")
    A(f"s_lshl_b32 s{sSEG}, s{sH}, 1"); A(f"s_add_u32 s{sSEG}, s{sSEG}, s{sT}"); A(f"s_sub_u32 s{sSEG}, s{sSEG}, 5")
    layer_norm(A, cfg)
    A.label("Wln_done"); A.vmq = []
    TS(0)
    bits(A, vKA, [(5, 1, 10), (4, 1, 9), (2, 1, 8), (3, 1, 7), (0, 2, 4)])
    bits(A, vST, [(2, 3, 15), (2, 3, 14), (5, 1, 6), (0, 2, 4)])
    A(f"v_add_u32 {v(vRD)}, {EXC}, {v(vL16)}")
    A(f"s_lshl_b32 s{sD}, s{sH}, 8")
    load_weights(A, [("n", sW1, sD, 8192), ("n", sW2, sD, 8192)])
    TS(1)
    def kv_addr(off):
        A(f"s_lshl_b32 s{sA}, s{sSEG}, 19"); A(f"s_lshl_b32 s{sB}, s{sH}, 14"); A(f"s_add_u32 s{sA}, s{sA}, s{sB}"); A(f"s_add_u32 s{sA}, s{sA}, {off}")
        A(f"s_lshl_b32 s{sB}, s{sWV}, 12"); A(f"s_add_u32 s{sC}, s{sA}, s{sB}")
    kv_flag = lambda: flag(A, KVF, 2, sH, 8)
    def kv_body():
        gemm1(A, True)
        A.wait(vm=0); A("s_barrier"); kv_flag()
        kv_addr(KV_OFF)
        pack(A, AC1, AC1)
        for n, m in ((0, 0x33333333), (1, 0xcccccccc)):
            A(f"s_mov_b32 vcc_lo, {m:#x}"); A(f"s_mov_b32 vcc_hi, {m:#x}")
            for r in range(4): A(f"v_cndmask_b32_dpp {v(AC1+8+4*n+r)}, {v(AC1+4-4*n+r)}, {v(AC1+4*n+r)}, vcc quad_perm:[2,3,0,1] row_mask:0xf bank_mask:0xf")
            A(f"buffer_store_dwordx4 {v(AC1+8+4*n,4)}, {v(vKA)}, {s(sWS,4)}, s{sC} offen offset:{n*64} sc1")
        pack(A, AC2, AC2)
        for ap in range(2): A(f"buffer_store_dwordx4 {v(AC2+4*ap,4)}, {v(vL16)}, {s(sWS,4)}, s{sC} offen offset:{2048 + ap*1024} sc1")
    A(f"s_mov_b32 s{sSEG}, s{sT}"); A(f"s_mov_b32 s{sEND}, 64")
    seg_loop(A, cfg, "Wkv", XN_OFF, 7, kv_body, kv_flag)
    TS(2)
    A.label("Wall")
    A(f"global_load_dwordx2 {v(vT0,2)}, {v(vZ)}, s[6:7] offset:128 sc1"); A(f"v_and_b32 {v(vT0)}, {v(vT0)}, {v(vT1)}")
    A(f"v_cmp_ne_u32 vcc, -1, {v(vT0)}"); A("s_cbranch_vccz Wall_ok"); spin(A, "Wall", cfg)
    A.label("Wall_ok"); A(f"s_mov_b64 {s(sLN,2)}, -1")
    A(f"s_cmp_lt_u32 s{sT}, 6"); A("s_cbranch_scc1 Wmlp")
    for n in (3, 4, 5): TS(n)
    bits(A, vVM, [(5, 1, 11), (1, 1, 10), (4, 1, 9), (2, 2, 5), (0, 1, 4)]); A(f"s_lshl_b32 s{sA}, s{sWV}, 7"); A(f"v_add_u32 {v(vVM)}, s{sA}, {v(vVM)}")
    A(f"s_mov_b32 s{sSEG}, 0"); A(f"s_mov_b32 s{sBUF}, 0")
    A.label("Whp_top")
    A(f"s_lshl_b32 s{sA}, s{sSEG}, 2"); A(f"s_add_u32 s{sA}, s{sA}, s{sWV}"); A(f"s_max_u32 s{sA}, s{sA}, 2"); A(f"s_sub_u32 s{sA}, s{sA}, 2"); A(f"s_lshl_b32 s{sA}, s{sA}, 13"); A(f"s_add_u32 s{sA}, s{sA}, {MEMG_OFF}")
    A(f"s_lshl_b32 s{sB}, s{sH}, 6"); A(f"s_add_u32 s{sB}, s{sB}, s{sA}"); A(f"s_add_u32 s{sB}, s{sB}, {3*2048}"); A(f"s_add_u32 s{sC}, s{sA}, 4096")
    A("s_mov_b64 exec, 1"); A.label("Whp_ka")
    A(f"v_mov_b32 {v(vT0)}, 0"); A(f"buffer_atomic_or {v(vT0)}, off, {s(sWS,4)}, s{sB} sc0")
    A(f"v_cmp_eq_u32 vcc, -1, {v(vT0)}"); A("s_cbranch_vccz Whp_ka_ok")
    spin(A, "Whp_ka", cfg)
    A.label("Whp_ka_ok"); A("s_mov_b64 exec, -1"); TT(0)
    A.label("Whp_ld")
    for i in range(8): A(f"buffer_load_dwordx4 {v(KM+4*i,4)}, {v(vL16)}, {s(sWS,4)}, s{sC if i >> 2 else sA} offen offset:{(i & 3)*1024} sc1")
    A(f"v_mov_b32 {v(vT0)}, 0")
    for i in range(8):
        A(f"ds_write_b128 {v(vVM)}, {v(KM+4*i,4)} offset:{i*4096}")
        for r in (0, 2): A(f"v_max3_u32 {v(vT0)}, {v(vT0)}, {v(KM+4*i+r)}, {v(KM+4*i+r+1)}")
    A(f"v_cmp_eq_u32 vcc, -1, {v(vT0)}"); A("s_cbranch_vccz Whp_ok")
    spin(A, "Whp_ld", cfg)
    A.label("Whp_ok")
    A.wait(lg=0); A("s_barrier"); TT(1)
    gemm1(A, True); TT(2)
    kv_addr(KVM_OFF)
    for n, r in enumerate((AC1, AC2)):
        pack(A, r, r)
        for ap in range(2): A(f"buffer_store_dwordx4 {v(r+4*ap,4)}, {v(vL16)}, {s(sWS,4)}, s{sC} offen offset:{n*2048 + ap*1024} sc1")
    A(f"s_mov_b32 s{sPREV}, s{sSEG}")
    TT(3); A.wait(vm=0); A("s_barrier"); TT(4)
    flag(A, HF, 2, sH, 8)
    A(f"s_add_u32 s{sSEG}, s{sSEG}, 1"); A(f"s_cmp_lt_u32 s{sSEG}, 16"); A("s_cbranch_scc1 Whp_top")
    A("s_branch Wend")
    A.forget(); A.label("Wmlp")
    srd(A, sW1, 64, 512 * 1792 * 2); srd(A, sW2, 80, 1792 * 512 * 2); A(f"s_load_dwordx2 s[4:5], s[0:1], 72")
    A(f"s_sub_u32 s{sA}, s{sU}, s{sH}"); A(f"s_mul_i32 s{sSRC}, s{sA}, 5042"); A(f"s_lshr_b32 s{sSRC}, s{sSRC}, 16")
    A(f"s_mul_i32 s{sB}, s{sSRC}, 13"); A(f"s_sub_u32 s{sA}, s{sA}, s{sB}"); A(f"s_mul_i32 s{sSEG}, s{sA}, 5"); A(f"s_add_u32 s{sEND}, s{sSEG}, 5"); A(f"s_min_u32 s{sEND}, s{sEND}, 64")
    A.wait(lg=0)
    A(f"s_cmp_ge_u32 s{sSRC}, 14"); A("s_cbranch_scc1 Watt")
    A(f"s_lshl_b32 s{sD}, s{sSRC}, 8"); A(f"s_lshl_b32 s{sA}, s{sWV}, 6"); A(f"s_add_u32 s{sA}, s{sD}, s{sA}")
    A(f"v_lshrrev_b32 {v(vT0)}, 5, {v(vL)}"); A(f"v_lshl_add_u32 {v(vT3)}, {v(vT0)}, 3, s{sA}")
    A(f"s_lshl_b32 s{sE}, s{sSRC}, 17"); A(f"s_lshl_b32 s{sA}, s{sWV}, 8"); A(f"s_add_u32 s{sE}, s{sE}, s{sA}")
    for q in range(4): A(f"global_load_dwordx2 {v(AC1+2*q,2)}, {v(vT3)}, s[4:5] offset:{16*q}")
    load_weights(A, [("n", sW1, sD, 3584), ("k", sW2, sE)])
    for i in range(8): A(f"v_lshlrev_b32 {v(MSK+2*i)}, 16, {v(AC1+i)}"); A(f"v_and_b32 {v(MSK+2*i+1)}, 0xffff0000, {v(AC1+i)}")
    TS(3)
    ml_flag = lambda: flag(A, MF - 128, 7, sSRC, 2)
    def mlp_body():
        gemm1(A, False, v(MSK, 16))
        k0, k1 = -2 * LOG2E * 0.7978845608028654, -2 * LOG2E * 0.7978845608028654 * 0.044715
        A(f"s_mov_b32 s{sA}, {fb(k1)}"); A(f"v_mov_b32 {v(vT0)}, {fb(k0)}")
        for i in range(16): A(f"v_mul_f32 {v(AC2+i)}, {v(AC1+i)}, {v(AC1+i)}")
        for i in range(16): A(f"v_fma_f32 {v(AC2+i)}, {v(AC2+i)}, s{sA}, {v(vT0)}")
        for i in range(0, 16, 2): A(f"v_pk_mul_f32 {v(AC2+i,2)}, {v(AC2+i,2)}, {v(AC1+i,2)}")
        for i in range(16): A(f"v_exp_f32 {v(AC2+i)}, {v(AC2+i)}")
        for i in range(16): A(f"v_add_f32 {v(AC2+i)}, 1.0, {v(AC2+i)}")
        for i in range(16): A(f"v_rcp_f32 {v(AC2+i)}, {v(AC2+i)}")
        for i in range(0, 16, 2): A(f"v_pk_mul_f32 {v(AC1+i,2)}, {v(AC1+i,2)}, {v(AC2+i,2)}")
        pack(A, AC1, AC1)
        A(f"v_xor_b32 {v(vRD)}, 8192, {v(vRD)}")
        exchange(A, AC1, ml_flag); gemm2(A)
    A(f"s_add_u32 s{sSRC}, s{sSRC}, 32")
    seg_loop(A, cfg, "Wml", Y_OFF, 1, mlp_body, ml_flag)
    A.label("Watt"); A.forget()
    TS(4)
    srd(A, sW1, 16, 4194304); srd(A, sW2, 40, 4194304); A(f"s_load_dwordx2 s[4:5], s[0:1], 88")
    A(f"s_lshl_b32 s{sD}, s{sH}, 8")
    A(f"s_lshl_b32 s{sE}, s{sH}, 17"); A(f"s_lshl_b32 s{sA}, s{sWV}, 8"); A(f"s_add_u32 s{sE}, s{sE}, s{sA}")
    bits(A, vXO, [(3, 1, 5), (2, 1, 3), (5, 1, 4), (4, 1, 2)])
    A(f"s_lshr_b32 s{sA}, s{sH}, 3"); A(f"s_lshl_b32 s{sA}, s{sA}, 8"); A(f"s_lshl_b32 s{sB}, s{sWV}, 6"); A(f"s_add_u32 s{sA}, s{sA}, s{sB}"); A(f"v_add_u32 {v(vXO)}, s{sA}, {v(vXO)}")
    A.wait(lg=0)
    A(f"global_load_dword {v(B2)}, {v(vXO)}, s[4:5]")
    load_weights(A, [("n", sW1, sD, 8192), ("k", sW2, sE)])
    TS(5)
    A(f"v_and_b32 {v(B2+1)}, 0xffff0000, {v(B2)}"); A(f"v_lshlrev_b32 {v(B2)}, 16, {v(B2)}")
    A(f"v_and_b32 {v(vT0)}, 3, {v(vL)}"); A(f"v_lshl_add_u32 {v(vXO)}, {v(vT0)}, 10, {v(vXO)}")
    A(f"s_and_b32 s{sA}, s{sH}, 7"); A(f"s_lshl_b32 s{sA}, s{sA}, 12"); A(f"v_add_u32 {v(vXO)}, s{sA}, {v(vXO)}")
    A(f"v_add_u32 {v(vRD)}, {EXC}, {v(vL16)}")
    A(f"v_and_b32 {v(vT1)}, 31, {v(vL)}"); A(f"v_lshrrev_b32 {v(vT0)}, 5, {v(vL)}"); A(f"v_lshlrev_b32 {v(vT0)}, 2, {v(vT0)}"); A(f"v_sub_u32 {v(vT1)}, {v(vT1)}, {v(vT0)}")
    A(f"v_mov_b32 {v(vT0)}, {fb(-1e9 * LOG2E)}")
    for i in range(16):
        A(f"v_cmp_gt_i32 vcc, {8*(i >> 2) + (i & 3)}, {v(vT1)}"); A(f"v_cndmask_b32 {v(MSK+i)}, 0, {v(vT0)}, vcc")
    A(f"v_and_b32 {v(vT1)}, 1, {v(vL)}"); A(f"v_lshlrev_b32 {v(vT1)}, 4, {v(vT1)}"); A(f"v_mov_b32 {v(vT0)}, 0x3f80"); A(f"v_lshlrev_b32 {v(vT1)}, {v(vT1)}, {v(vT0)}")
    A(f"v_bfe_u32 {v(vT0)}, {v(vL)}, 1, 3")
    for r in range(4): A(f"v_cmp_eq_u32 vcc, {2*r}, {v(vT0)}"); A(f"v_cndmask_b32 {v(SEL+r)}, 0, {v(vT1)}, vcc")
    vPR, vPL, vAF = vS1, vS2, vTRA
    bits(A, vPR, [(4, 2, 10), (0, 4, 4)]); A(f"s_lshl_b32 s{sA}, s{sWV}, 8"); A(f"v_add_u32 {v(vPR)}, s{sA}, {v(vPR)}")
    A(f"v_lshrrev_b32 {v(vT0)}, 5, {v(vL)}"); A(f"v_lshl_add_u32 {v(vPL)}, {v(vT0)}, 30, {v(vPR)}")
    bits(A, vKA, [(5, 1, 10), (4, 1, 9), (2, 1, 8), (3, 1, 7), (1, 1, 6), (0, 1, 4)], KXL)
    bits(A, vKM, [(5, 1, 9), (0, 3, 4)]); bits(A, vAF, [(0, 5, 7)])
    A(f"v_mov_b64 {v(VM+2,2)}, 0"); A(f"v_mov_b64 {v(PM+2,2)}, 0")
    A(f"s_lshl_b32 s{sA}, s{sH}, 8"); A(f"s_add_u32 s{sA}, s{sA}, {KVF}"); A(f"v_lshlrev_b32 {v(vT1)}, 2, {v(vL)}"); poll(A, cfg, vT1, sA)
    A(f"v_and_b32 {v(vT2)}, 15, {v(vL)}"); A(f"v_min_u32 {v(vT2)}, 13, {v(vT2)}"); A(f"v_lshlrev_b32 {v(vT2)}, 2, {v(vT2)}"); A(f"s_mov_b32 s{sA}, {MF}")
    for n in range(3):
        A(f"v_lshrrev_b32 {v(vT1)}, 4, {v(vL)}"); A(f"v_add_u32 {v(vT1)}, {4*n}, {v(vT1)}"); A(f"v_mul_u32_u24 {v(vT1)}, 6, {v(vT1)}"); A(f"v_add_u32 {v(vT1)}, s{sT}, {v(vT1)}")
        A(f"v_min_u32 {v(vT1)}, 63, {v(vT1)}"); A(f"v_lshl_add_u32 {v(vT1)}, {v(vT1)}, 7, {v(vT2)}"); poll(A, cfg, vT1, sA)
    GP, FA = 240, 252
    def part_base(sseg):
        A(f"s_mul_i32 s{sA}, s{sseg}, {SEGP}"); A(f"s_mul_i32 s{sB}, s{sH}, {CHUNK}"); A(f"s_add_u32 s{sA}, s{sA}, s{sB}"); A(f"s_add_u32 s{sA}, s{sA}, {PART_OFF}")
    def src_loads(land, ns):
        for n in ns:
            A(f"s_add_u32 s{sB}, s{sA}, {n*4096}"); A(f"buffer_load_dwordx4 {v(land+4*(n % 8),4)}, {v(vPL if n == 11 else vPR)}, {s(sWS,4)}, s{sB} offen sc1")
    def src_sum(acc, land, ns):
        for n in ns: A(f"v_mfma_f32_16x16x32_bf16 {v(acc,4)}, {v(SEL,4)}, {v(land+4*(n % 8),4)}, {v(acc,4) if n != ns[0] else 0}")
    def finish():
        src_sum(RA, KF, list(range(8)))
        for r in range(2): A(f"v_fmac_f32 {v(GP+2+r)}, {v(RA+r)}, {v(GP+r)}")
        A(f"v_cvt_pk_bf16_f32 {v(GP+2)}, {v(GP+2)}, {v(GP+3)}")
        A(f"s_lshl_b32 s{sA}, s{sPREV}, 15"); A(f"buffer_store_dword {v(GP+2)}, {v(vXO)}, {s(sOUT,4)}, s{sA} offen")
    def af_wait():
        A(f"s_lshl_b32 s{sA}, s{sPREV}, 12"); A(f"s_add_u32 s{sA}, s{sA}, {AF}"); poll(A, cfg, vAF, sA); part_base(sPREV); src_loads(KF, list(range(8)))
    at_flag = lambda: flag(A, AF, 12, sH, 7)
    def att_body():
        kv_addr(KV_OFF)
        A(f"s_lshl_b32 s{sB}, s{sWV}, 11"); A(f"s_add_u32 m0, s{sB}, {KXL}")
        for n in range(2): A(f"buffer_load_dwordx4 {v(vL16)}, {s(sWS,4)}, s{sC} offen offset:{n*1024} sc1 lds")
        for ap in range(2): A(f"buffer_load_dwordx4 {v(VF+4*ap,4)}, {v(vL16)}, {s(sWS,4)}, s{sC} offen offset:{2048 + ap*1024} sc1")
        A(f"s_lshl_b32 s{sA}, s{sSEG}, 15"); A(f"buffer_load_dword {v(XV)}, {v(vXO)}, {s(sXR,4)}, s{sA} offen")
        part_base(sSEG); src_loads(SMA, [8, 9, 10, 11])
        A(f"s_add_u32 s{sF}, s{sSEG}, 2"); A(f"s_and_b32 s{sD}, s{sF}, 60"); A(f"s_lshl_b32 s{sB}, s{sH}, 8"); A(f"s_add_u32 s{sD}, s{sD}, s{sB}"); A(f"s_add_u32 s{sD}, s{sD}, {HF}")
        A(f"buffer_load_dword {v(FA)}, off, {s(sWS,4)}, s{sD} sc1")
        gemm1(A, False)
        for i in range(16): A(f"v_mul_f32 {v(AC1+i)}, {fb(CSC)}, {v(AC1+i)}")
        pack(A, AC1, AC1); exchange(A, AC1, at_flag)
        for k in range(8): A(f"ds_read_b128 {v(KF+4*k,4)}, {v(vKA)} offset:{(k >> 1)*2048 + (k & 1)*32}")
        A(f"s_lshr_b32 s{sC}, s{sF}, 2")
        A(f"s_lshl_b32 s{sA}, s{sC}, 19"); A(f"s_lshl_b32 s{sB}, s{sH}, 14"); A(f"s_add_u32 s{sE}, s{sA}, s{sB}"); A(f"s_add_u32 s{sE}, s{sE}, {KVM_OFF}")
        A(f"s_lshl_b32 s{sB}, s{sWV}, 12"); A(f"s_add_u32 s{sC}, s{sE}, s{sB}")
        A(f"s_and_b32 s{sB}, s{sF}, 2"); A(f"s_lshl_b32 s{sB}, s{sB}, 9"); A(f"s_add_u32 s{sC}, s{sC}, s{sB}")
        A(f"s_and_b32 s{sB}, s{sF}, 1"); A(f"s_lshl_b32 s{sB}, s{sB}, 3"); A(f"s_add_u32 s{sC}, s{sC}, s{sB}")
        A(f"s_and_b32 s{sB}, s{sF}, 3"); A(f"s_lshl_b32 s{sB}, s{sB}, 7"); A(f"s_add_u32 s{sE}, s{sE}, s{sB}")
        def km_loads():
            for k in range(8):
                A(f"buffer_load_dwordx4 {v(KM+4*k,4)}, {v(vKM)}, {s(sWS,4)}, s{sE} offen offset:{(k & 1)*1024} sc1")
                if k & 1: A(f"s_add_u32 s{sE}, s{sE}, 4096")
            A(f"buffer_load_dwordx2 {v(VM,2)}, {v(vL16)}, {s(sWS,4)}, s{sC} offen offset:2048 sc1")
        A(f"v_cmp_ne_u32 s[50:51], 1, {v(FA)}"); A("s_nop 4"); A(f"s_cmp_ge_u32 s{sSEG}, 62"); A("s_cselect_b64 s[50:51], -1, s[50:51]")
        A("s_cmp_lg_u64 s[50:51], 0"); A("s_cbranch_scc1 Wat_k1")
        km_loads()
        A.label("Wat_k1"); A.vmq = []
        for k in range(8): A(f"v_mfma_f32_32x32x16_bf16 {v(AC2,16)}, {v(KF+4*k,4)}, {v(BR+4*k,4)}, {v(AC2,16) if k else v(MSK,16)}")
        src_sum(GA, SMA, [8, 9, 10, 11])
        MX = vT3
        A(f"v_max3_f32 {v(MX)}, {v(AC2)}, {v(AC2+1)}, {v(AC2+2)}")
        for i in range(3, 15, 2): A(f"v_max3_f32 {v(MX)}, {v(MX)}, {v(AC2+i)}, {v(AC2+i+1)}")
        A(f"v_max_f32 {v(MX)}, {v(MX)}, {v(AC2+15)}")
        for r in range(2): A(f"v_add_f32 {v(GA+r)}, {v(GA+r)}, {v(B2+r)}")
        for r in range(2): A(f"v_mul_f32 {v(GA+2+r)}, {fb(-LOG2E)}, {v(GA+r)}")
        for r in range(2): A(f"v_exp_f32 {v(GA+2+r)}, {v(GA+2+r)}")
        for r in range(2): A(f"v_add_f32 {v(GA+2+r)}, 1.0, {v(GA+2+r)}")
        for r in range(2): A(f"v_rcp_f32 {v(GA+2+r)}, {v(GA+2+r)}")
        for r in range(2): A(f"v_mul_f32 {v(GA+r)}, {v(GA+r)}, {v(GA+2+r)}")
        A(f"v_lshlrev_b32 {v(GA+2)}, 16, {v(XV)}"); A(f"v_and_b32 {v(GA+3)}, 0xffff0000, {v(XV)}")
        A("s_cmp_eq_u64 s[50:51], 0"); A("s_cbranch_scc1 Wat_k2")
        A(f"s_cmp_lt_i32 s{sPREV}, 0"); A("s_cbranch_scc1 Wat_k3")
        af_wait(); finish(); A(f"s_mov_b32 s{sPREV}, -1")
        A.label("Wat_k3"); A.vmq = []
        TT(0)
        A(f"s_cmp_lt_u32 s{sSEG}, 62"); A("s_cbranch_scc1 Wat_k4")
        bits(A, vKM, [(5, 1, 8), (1, 2, 6), (0, 1, 4)], KVL); bits(A, vVM, [(5, 1, 9), (4, 1, 7), (0, 3, 4), (3, 1, 2)], KVL + 8)
        A(f"s_and_b32 s{sA}, s{sSEG}, 1"); A(f"s_lshl_b32 s{sA}, s{sA}, 5"); A(f"s_add_u32 s{sA}, s{sA}, s{sH}"); A(f"s_lshl_b32 s{sA}, s{sA}, 12")
        A(f"s_lshl_b32 s{sB}, s{sWV}, 10"); A(f"s_add_u32 s{sA}, s{sA}, s{sB}"); A(f"s_add_u32 s{sA}, s{sA}, {KVD_OFF}"); A(f"v_add_u32 {v(vVM)}, s{sB}, {v(vVM)}")
        A(f"s_add_u32 s{sB}, s{sB}, {KVL}"); A(f"v_add_u32 {v(vT2)}, s{sB}, {v(vL16)}")
        A.label("Wat_km")
        A(f"buffer_load_dwordx4 {v(KM,4)}, {v(vL16)}, {s(sWS,4)}, s{sA} offen sc1")
        A(f"ds_write_b128 {v(vT2)}, {v(KM,4)}")
        A(f"v_max3_u32 {v(vT0)}, {v(KM)}, {v(KM+1)}, {v(KM+2)}"); A(f"v_max_u32 {v(vT0)}, {v(vT0)}, {v(KM+3)}")
        A(f"v_cmp_eq_u32 vcc, -1, {v(vT0)}"); A("s_cbranch_vccz Wat_km_ok")
        spin(A, "Wat_km", cfg)
        A.label("Wat_km_ok"); TT(1)
        A.wait(lg=0); A("s_barrier")
        smm = [f"v_mfma_f32_32x32x16_bf16 {v(SMA,16)}, {v(KM+4*k,4)}, {v(BR+4*k,4)}, {v(SMA,16) if k else 0}" for k in range(8)]
        for k in range(8):
            for t in range(2): A(f"ds_read_b64 {v(KM+4*k+2*t,2)}, {v(vKM)} offset:{(2*(k >> 2) + t)*1024 + ((k >> 1) & 1)*512 + (k & 1)*32}")
            if k >= 3: A(smm[k - 3])
        A(f"ds_read2_b32 {v(VM,2)}, {v(vVM)} offset0:0 offset1:64")
        for x in smm[5:7]: A(x)
        A.wait(lg=0); A("s_branch Wat_k5")
        A.forget(); A.label("Wat_k4")
        poll(A, cfg, None, sD); TT(1); km_loads()
        A.label("Wat_k2")
        for x in smm[:7]: A(x)
        A.label("Wat_k5"); A(smm[7])
        A(f"v_max3_f32 {v(MX)}, {v(MX)}, {v(SMA)}, {v(SMA+1)}"); A(f"v_max3_f32 {v(MX)}, {v(MX)}, {v(SMA+2)}, {v(SMA+3)}")
        A(f"v_mov_b32 {v(vT0)}, {v(MX)}"); A(f"v_permlane32_swap_b32 {v(MX)}, {v(vT0)}"); A(f"v_max_f32 {v(MX)}, {v(MX)}, {v(vT0)}")
        sc = [AC2 + i for i in range(16)] + [SMA + r for r in range(4)]
        for r in sc: A(f"v_sub_f32 {v(r)}, {v(r)}, {v(MX)}")
        for r in sc: A(f"v_exp_f32 {v(r)}, {v(r)}")
        PB = KM
        pack(A, PB, AC2); A(f"v_cvt_pk_bf16_f32 {v(PM)}, {v(SMA)}, {v(SMA+1)}"); A(f"v_cvt_pk_bf16_f32 {v(PM+1)}, {v(SMA+2)}, {v(SMA+3)}")
        A(f"v_mfma_f32_32x32x16_bf16 {v(AC1,16)}, {v(VF,4)}, {v(PB,4)}, 0")
        for i in range(0, 8, 2): A(f"v_add_f32 {v(sc[i])}, {v(sc[i])}, {v(sc[i+1])}")
        A(f"v_mfma_f32_32x32x16_bf16 {v(AC1,16)}, {v(VF+4,4)}, {v(PB+4,4)}, {v(AC1,16)}")
        for i in range(8, 20, 2): A(f"v_add_f32 {v(sc[i])}, {v(sc[i])}, {v(sc[i+1])}")
        A(f"v_mfma_f32_32x32x16_bf16 {v(AC1,16)}, {v(VM,4)}, {v(PM,4)}, {v(AC1,16)}")
        for i in range(2, 20, 2): A(f"v_add_f32 {v(sc[0])}, {v(sc[0])}, {v(sc[i])}")
        A(f"v_mov_b32 {v(vT0)}, {v(sc[0])}"); A(f"v_permlane32_swap_b32 {v(sc[0])}, {v(vT0)}"); A(f"v_add_f32 {v(vT0)}, {v(sc[0])}, {v(vT0)}"); A(f"v_rcp_f32 {v(vT0)}, {v(vT0)}")
        for i in range(0, 16, 2): A(f"v_pk_mul_f32 {v(AC1+i,2)}, {v(AC1+i,2)}, {v(vT0,2)} op_sel_hi:[1,0]")
        TT(2); pack(A, AC1, AC1); exchange(A, AC1, None, 8192)
        A(f"s_cmp_lt_i32 s{sPREV}, 0"); A("s_cbranch_scc1 Wat_g1")
        af_wait()
        A.label("Wat_g1")
        gemm2(A)
        A(f"s_cmp_lt_i32 s{sPREV}, 0"); A("s_cbranch_scc1 Wat_g2")
        finish()
        A.label("Wat_g2") ; A("s_nop 1"); TT(3)
        A(f"v_mov_b64 {v(GP,2)}, {v(GA,2)}"); A(f"v_mov_b64 {v(GP+2,2)}, {v(GA+2,2)}")
    def att_fin():
        TT(4); part_base(sPREV)
        A.label("Wat_lp"); src_loads(KF, list(range(8))); A(f"v_mov_b32 {v(vT0)}, 0")
        for r in range(0, 32, 2): A(f"v_max3_u32 {v(vT0)}, {v(vT0)}, {v(KF+r)}, {v(KF+r+1)}")
        A(f"v_cmp_eq_u32 vcc, -1, {v(vT0)}"); A("s_cbranch_vccz Wat_lp_ok"); spin(A, "Wat_lp", cfg)
        A.label("Wat_lp_ok"); TT(5); finish()
    A(f"s_cmp_lt_u32 s{sT}, 4"); A(f"s_cselect_b32 s{sSEG}, 60, 54"); A(f"s_add_u32 s{sSEG}, s{sSEG}, s{sT}"); part_base(sSEG)
    for r in range(4): A(f"v_mov_b32 {v(KF+r)}, -1")
    for n in range(8): A(f"s_add_u32 s{sB}, s{sA}, {n*4096}"); A(f"buffer_store_dwordx4 {v(KF,4)}, {v(vPR)}, {s(sWS,4)}, s{sB} offen sc1")
    A(f"s_mov_b32 s{sSEG}, s{sT}"); A(f"s_mov_b32 s{sEND}, 64"); A(f"s_mov_b32 s{sSRC}, s{sH}")
    seg_loop(A, cfg, "Wat", XN_OFF, 6, att_body, att_fin)
    A.label("Wend")
    TS(6)
```

```python
from gen import *
import struct

X = 131072
TRACE = 0
KV_OFF, KVM_OFF, IN1_OFF = 4096, 33 << 20, (50 << 20) + X
MEM_OFF = IN1_OFF + (512 << 10)
MEMG_OFF = 58 << 20
KVD_OFF = 59 << 20
MEMB, QT, PX, OX, SEL, MXB = 0, 8192, 12288, 13312, 17408, 18432
CSC = 0.12751743032665168
NSEG = 64

vIDX, vL16, vWL, vVX, vKW, vTR, vOR, vS1, vPUB, vKX, vTOUCH, vJ0, vPW = range(0, 13)
vJ1 = 15
vSEN, vLa, vLb = 13, 14, 15
A0 = 16
QA, KA, VA = 48, 56, 64
KX, VX = 72, 80
T = 88
LAND = [KX, VX, T, T + 8, T + 16, T + 24, T + 32]
sWS, sW2 = 8, 12
sH, sSTEP, sKV, sKVM, sST1, sST1b, sLD1, sRS1, sPUB, sRS2, sLD2, sSPIN, sGIVE, sT0, sT1, sC = range(16, 32)
sC2 = 32
sLO, sHI = 34, 35
sONE, sHLF, sTAG, sSPN2, sMSK, sKVb, sKVt = 42, 44, 46, 47, 48, 50, 51
sNW, sNR = 68, 41
sKM, sKF = 52, 54
KVF = 56 << 20

ORDER = 'qkvo'
def frag_places(w):
    lu = [("q", 0), ("q", 1), ("q", 2), ("k", 0), ("k", 1), ("k", 2), ("o", 6), ("o", 7)]
    units = [(m, n) for m in ORDER for n in range(8) if (m, n) not in lu] + lu
    place = {}; r = 128; frs = []
    for k, (m, n) in enumerate(units):
        fr = [(m, t, n) for t in range(2)] if m != "o" else [("o", n >> 1, (2 * (n & 1) + fi - w) & 3) for fi in range(2)]
        for fi, f in enumerate(fr):
            if k < 24: place[f] = r; r += 8
            else: place[f] = ("lds", 2 * (k - 24) + fi)
        frs.append(fr)
    assert r == 512
    return place, units, frs

def entry_loads(A):
    A(f"s_load_dwordx4 s[40:43], s[0:1], 16"); A(f"s_load_dwordx4 s[44:47], s[0:1], 32"); A(f"s_load_dwordx2 s[48:49], s[0:1], 8")

def prologue(A, w, cfg):
    place, units, frs = frag_places(w)
    L, t0, t1, t2 = 100, 101, 102, 103
    vPS, vOS, vP, vO = 104, 108, 120, 124
    if cfg.get("alone"): entry_loads(A)
    A(f"v_and_b32 {v(L)}, 63, v0")
    def bits(dst, terms, const=0):
        A(f"v_mov_b32 {v(dst)}, {const}")
        for (b, n, sh) in terms:
            A(f"v_bfe_u32 {v(t0)}, {v(L)}, {b}, {n}"); A(f"v_lshl_add_u32 {v(dst)}, {v(t0)}, {sh}, {v(dst)}")
    A(f"v_lshrrev_b32 {v(t1)}, 1, {v(L)}"); A(f"v_and_b32 {v(t1)}, 8, {v(t1)}"); A(f"v_xor_b32 {v(t1)}, {v(t1)}, {v(L)}"); A(f"v_and_b32 {v(t1)}, 15, {v(t1)}"); A(f"v_lshlrev_b32 {v(t1)}, 4, {v(t1)}")
    A(f"v_lshrrev_b32 {v(t2)}, 4, {v(L)}")
    A(f"v_lshl_add_u32 {v(vPS)}, {v(t2)}, 13, {v(t1)}"); A(f"v_lshl_add_u32 {v(vOS)}, {v(t2)}, 10, {v(t1)}")
    if w & 1: A(f"v_xor_b32 {v(vPS)}, 16, {v(vPS)}")
    A(f"v_xor_b32 {v(vPS+1)}, 64, {v(vPS)}")
    A(f"v_xor_b32 {v(vOS+1)}, 64, {v(vOS)}")
    base = {"q": 52, "k": 56, "v": 60, "o": 64}
    for i, m in enumerate("qkvo"): A(f"s_mov_b32 s{base[m]+2}, 0x400000"); A(f"s_mov_b32 s{base[m]+3}, 0x20000")
    A(f"s_lshl_b32 s50, s{sH}, 8"); A(f"s_lshl_b32 s51, s{sH}, 17")
    A.wait(lg=0)
    for i, m in enumerate("qkvo"): A(f"s_mov_b64 {s(base[m],2)}, {s(40+2*i,2)}")
    def dma(un):
        m, k = units[un]
        for n in range(4):
            row = 16 * w + 4 * n
            if m != "o": so = (64 * k + row) * 8192; sb = 50; vs = vPS + (n & 1)
            else: so = (64 * (k & 1) + row) * 1024 + 256 * (k >> 1); sb = 51; vs = vOS + (n >> 1)
            A(f"s_mov_b32 m0, {w*32768 + (un % 8)*4096 + n*1024}"); A(f"s_add_u32 s{sT0}, s{sb}, {so}")
            A(f"buffer_load_dwordx4 {v(vs)}, {s(base[m],4)}, s{sT0} offen {cfg.get('wfl','')} lds", tag=("u", un))
    def PS(n):
        if cfg.get("pstamp"): A(f"s_memrealtime s[{70+2*n}:{71+2*n}]", tag="stamp")
    def c_o():
        bits(vO, [(2, 1, 8), (5, 1, 10), (4, 1, 11), (2, 1, 7), (4, 1, 6), (3, 1, 5), (0, 2, 3)])
        A(f"v_xor_b32 {v(vO)}, {w*64}, {v(vO)}"); A(f"v_add_u32 {v(vO+1)}, 65536, {v(vO)}")
    PS(0)
    dma(0); dma(1)
    bits(vP, [(2, 1, 8), (4, 2, 10), (3, 1, 15), (2, 1, 7), (4, 1, 6), (1, 1, 5), (3, 1, 4), (0, 1, 3)])
    A(f"v_xor_b32 {v(vP)}, {w*64}, {v(vP)}"); A(f"v_xor_b32 {v(vP+1)}, 16, {v(vP)}")
    for k in range(2): A(f"v_add_u32 {v(vP+2+k)}, 65536, {v(vP+k)}")
    LA = cfg.get('look', 4)
    c_o()
    for un in range(2, LA): dma(un)
    PS(1)
    def c_mem0():
        bits(t2, [(4, 1, 10), (5, 1, 5), (0, 2, 2)], 256 * w)
        A(f"s_and_b32 s{sT0}, s{sH}, 3"); A(f"s_lshl_b32 s{sT0}, s{sT0}, 11"); A(f"s_lshr_b32 s{sT1}, s{sH}, 3"); A(f"s_lshl_b32 s{sT1}, s{sT1}, 6"); A(f"s_add_u32 s{sT0}, s{sT0}, s{sT1}")
        A(f"s_and_b32 s{sT1}, s{sH}, 4"); A(f"s_lshl_b32 s{sT1}, s{sT1}, 2"); A(f"s_add_u32 s{sT0}, s{sT0}, s{sT1}"); A(f"v_add_u32 {v(t2)}, s{sT0}, {v(t2)}")
        A(f"global_load_dword {v(110)}, {v(t2)}, s[48:49]")
    def c_in1():
        bits(vL16, [(0, 6, 4)], X)
        for r in range(4): A(f"v_mov_b32 {v(112+r)}, -1")
        A(f"s_lshl_b32 s{sLD1}, s{sH}, 13"); A(f"s_add_u32 s{sLD1}, s{sLD1}, {IN1_OFF + w*2048 - X}")
        A(f"s_xor_b32 s{sRS1}, s{sLD1}, {256<<10}")
        for sr in (sLD1, sRS1):
            for n in range(2): A(f"buffer_store_dwordx4 {v(112,4)}, {v(vL16)}, {s(sWS,4)}, s{sr} offen offset:{n*1024} sc1")
    def c_ring():
        bits(vPUB, [(4, 2, 4), (0, 2, 2), (2, 1, 30)])
        A(f"v_bfe_u32 {v(t0)}, {v(L)}, 3, 1"); A(f"v_lshlrev_b32 {v(t0)}, 30, {v(t0)}"); A(f"v_or_b32 {v(vPUB)}, {v(t0)}, {v(vPUB)}")
        A(f"s_lshl_b32 s{sPUB}, s{sH}, 6"); A(f"s_add_u32 s{sPUB}, s{sPUB}, {MEM_OFF + w*2048}")
        for sl in (1, 2, 3):
            A(f"s_add_u32 s{sT0}, s{sPUB}, {sl*8192}"); A(f"buffer_store_dword {v(112)}, {v(vPUB)}, {s(sWS,4)}, s{sT0} offen sc1")
        A(f"buffer_store_dword {v(110)}, {v(vPUB)}, {s(sWS,4)}, s{sPUB} offen sc1")
    def c_sel():
        bits(t2, [(0, 2, 2), (2, 2, 0)])
        A(f"v_and_b32 {v(t1)}, 1, {v(t2)}"); A(f"v_lshlrev_b32 {v(t1)}, 4, {v(t1)}"); A(f"v_mov_b32 {v(t0)}, 0x3f80"); A(f"v_lshlrev_b32 {v(t1)}, {v(t1)}, {v(t0)}")
        A(f"v_lshrrev_b32 {v(t2)}, 1, {v(t2)}")
        for r in range(4):
            A(f"v_cmp_eq_u32 vcc, {r}, {v(t2)}"); A(f"v_cndmask_b32 {v(112+r)}, 0, {v(t1)}, vcc")
        A(f"ds_write_b128 {v(vL16)}, {v(112,4)} offset:{SEL}")
        A(f"v_bfe_u32 {v(t0)}, {v(L)}, 1, 1"); A(f"v_mul_u32_u24 {v(t0)}, 0xaaaa, {v(t0)}"); A(f"v_add_u32 {v(vIDX)}, 0x4444, {v(t0)}")
    def c_scal():
        A(f"s_lshl_b32 s{sKV}, s{sH}, 14"); A(f"s_add_u32 s{sKV}, s{sKV}, {KV_OFF}")
        A(f"s_add_u32 s{sKVM}, s{sPUB}, {MEMG_OFF - MEM_OFF}"); A(f"v_mov_b32 {v(vLa)}, {v(110)}")
        A(f"s_lshl_b32 s{sST1}, s{sH}, 6"); A(f"s_add_u32 s{sST1}, s{sST1}, {IN1_OFF - X + w*65536}")
        A(f"s_mov_b32 s{sSTEP}, 0"); A(f"s_mov_b32 s{sGIVE}, 0")
        A(f"s_mov_b32 s{sC2}, {struct.unpack('<I', struct.pack('<f', CSC))[0]:#x}")
        for r in range(2): A(f"s_mov_b32 s{sONE+r}, 0x3f803f80"); A(f"s_mov_b32 s{sHLF+r}, 0x3f003f00"); A(f"s_mov_b32 s{sMSK+r}, 0x33333333")
        A(f"s_mov_b32 s{sLO}, {(127-60)<<23:#x}"); A(f"s_mov_b32 s{sHI}, {120<<23:#x}")
    chores = {0: c_mem0, 2: lambda: bits(vWL, [(0, 6, 4)], w * 32768), 3: lambda: bits(vKW, [(0, 3, 5), (4, 2, 3), (3, 1, 2)], X + QT + w * 1024),
              4: lambda: bits(vTR, [(5, 1, 10), (0, 5, 3)], X + QT), 5: lambda: bits(vOR, [(2, 4, 6), (0, 1, 4)], X),
              6: lambda: bits(vPW, [(0, 4, 4), (4, 2, 2)], X + PX + w * 256), 7: lambda: bits(vS1, [(3, 1, 15), (4, 2, 13), (0, 3, 3)], X),
              8: c_in1, 9: c_ring, 10: lambda: bits(vVX, [(4, 2, 9), (3, 1, 8), (0, 3, 4)], w * 4096),
              11: lambda: bits(vKX, [(5, 1, 12), (4, 1, 10), (0, 4, 4)], w * 256), 12: c_sel, 13: c_scal}
    def settle(un):
        for q in range(4): A(f"ds_write_b128 {v(vWL)}, {v(A0+16*(un & 1)+4*q,4)} offset:{(un % 8)*4096 + q*1024}")
    for un in range(32):
        slot = un % 8
        A.wait_tag(("u", un)); A.wait(lg=0); A("s_barrier")
        if un % 8 == 0: PS(2 + un // 8)
        if un == 31: PS(6)
        if un == 17: cfg["arrive"](A, w)
        for fi, f in enumerate(frs[un]):
            dst = place[f] if un < 24 else A0 + 16 * (un & 1) + 8 * fi
            for p in range(4):
                if f[0] != "o": A(f"ds_read_b64_tr_b16 {u(dst+2*p,2)}, {v(vP + 2*(p>>1) + fi)} offset:{slot*4096 + (p&1)*512}")
                else: A(f"ds_read_b64_tr_b16 {u(dst+2*p,2)}, {v(vO+fi)} offset:{slot*4096 + (p&1)*512 + (p>>1)*32768}")
        if un > 24: settle(un - 1)
        if un + LA < 32: dma(un + LA)
        if un + LA == 32 and not cfg.get("alone"):
            A("v_mov_b32 v118, 0"); A(f"v_lshrrev_b32 {v(vJ0)}, 2, {v(vL16)}"); A(f"s_lshl_b32 s{sT0}, s{sH}, 8"); A(f"s_add_u32 s{sT0}, s{sT0}, {KVF - (X >> 2)}")
            A("global_load_dwordx2 v[114:115], v118, s[6:7] offset:128 sc1"); A("global_load_dwordx2 v[116:117], v118, s[6:7] sc1")
            A(f"buffer_load_dword {v(vJ0)}, {v(vJ0)}, {s(sWS,4)}, s{sT0} offen sc1")
        if un in chores: chores[un]()
    A.wait(lg=0); A("s_barrier"); settle(31)
    A.wait(lg=0)

def loop(A, w, cfg, sc):
    place = frag_places(w)[0]
    stamp = cfg.get("stamp"); meas = cfg.get("meas", True); spinmax = cfg.get("spin", 100000)
    def ST(n):
        if stamp and n in stamp: k = stamp.index(n); A(f"s_memtime s[{70+2*k}:{71+2*k}]", tag="stamp")
    lab = lambda n: f"T{n}_{w}{sc}"
    L0, L1, L2, L3 = T, T + 8, T + 16, T + 24
    ONE, VB = T + 32, T + 36
    land = {("q",0,0): A0 + 16, ("q",1,0): VA, ("q",0,1): L0, ("q",1,1): L1, ("q",0,2): L2, ("q",1,2): L3,
            ("k",0,0): L0, ("k",0,1): L1, ("k",0,2): L2, ("k",1,0): L3, ("k",1,1): L0, ("k",1,2): L1,
            ("o",3,0): L2, ("o",3,1): L3, ("o",3,2): QA, ("o",3,3): KA}
    W = lambda f: u(land[f] if f in land else place[f], 8)
    wr = lambda f: [f"ds_read_b128 {v(land[f]+4*hh,4)}, {v(vWL)} offset:{place[f][1]*2048 + hh*1024}" for hh in range(2)]
    acc = {"q": QA, "k": KA, "v": VA}
    def sm(m, t, kk): return f"v_smfmac_f32_16x16x64_bf16 {v(acc[m]+4*t,4)}, {v(A0+4*kk,4)}, {W((m,t,kk))}, {v(vIDX)}"
    def put(y):
        if callable(y): y()
        elif isinstance(y, tuple): A(y[0], tag=y[1])
        else: A(y)
    def weave(mf, fill, nm="-", nxt=None):
        assert max(fill) < len(mf)
        for i, x in enumerate(mf):
            A(x); ST(f"{nm}{i}")
            f = fill.get(i, []); nx = mf[i + 1] if i + 1 < len(mf) else nxt
            for k, y in enumerate(f):
                if k == len(f) - 1 and isinstance(y, str) and y.startswith("v_") and nx: A.prewait(nx, y)
                put(y)
    pw = lambda *x: (lambda: A.prewait(*x))
    def bar(tag):
        def f(): A.wait_tag(tag); A("s_barrier")
        return f
    zero = lambda r: f"v_mov_b64 {v(r,2)}, 0"
    ad = lambda d, x, y: f"v_add_f32 {v(d)}, {v(x)}, {v(y)}"
    pk = lambda d, x, y: f"v_pk_add_f32 {v(d,2)}, {v(x,2)}, {v(y,2)}"
    cv = lambda d, x: f"v_cvt_pk_bf16_f32 {v(d)}, {v(x)}, {v(x+1)}"
    trr = lambda dst, m, t, off: f"ds_read_b64_tr_b16 {v(dst,2)}, {v(vTR)} offset:{off + m*2048 + t*256}"
    win = sum([wr(f) for f in [("q",0,0),("q",0,1),("q",1,1),("q",0,2),("q",1,2),("q",1,0)]], [])
    winz = [zero(QA + 2 * k) for k in range(8)]
    KVS = 0 if cfg.get("nokv") else 128 * 4096
    kxl = [f"buffer_load_dwordx4 {v(KX+4*n,4)}, {v(vKX)}, {s(sWS,4)}, s{sKVb if n else sKV} offen sc1" for n in range(2)]
    vxl = [f"buffer_load_dwordx4 {v(VX+4*n,4)}, {v(vVX)}, {s(sWS,4)}, s{sKV} offen offset:{2048 + n*128} sc1" for n in range(2)]
    touch = f"buffer_load_dword {v(vTOUCH)}, {v(vTOUCH)}, {s(sWS,4)}, s{sKVt} offen {cfg.get('tfl', 'sc1')}"
    if cfg.get("notouch"): touch = "s_nop 0"
    wint = [f"v_bfe_u32 {v(vTOUCH)}, {v(vL16)}, 4, 5", f"v_lshlrev_b32 {v(vTOUCH)}, 7, {v(vTOUCH)}"]
    if not cfg.get("alone"):
        wint += [f"s_lshl_b32 s{sT0}, s{sSTEP}, 2", f"s_add_u32 s{sT0}, s{sT0}, s{sKF}", f"s_sub_u32 s{sT0}, s{sT0}, s{sKVt}",
                 f"s_add_u32 s{sT0}, s{sT0}, {(X >> 2) + 8}", f"v_writelane_b32 {v(vTOUCH)}, s{sT0}, 32"]
    kvn = [f"s_add_u32 s{sKV}, s{sKV}, {KVS}", f"s_add_u32 s{sKVb}, s{sKV}, 8192", f"s_add_u32 s{sKVt}, s{sKV}, {w*4096}"]
    pub = lastpub = f"buffer_store_dword {v(vLa)}, {v(vPUB)}, {s(sWS,4)}, s{sKVM} offen sc1"
    if cfg.get("nopub"): pub = "s_nop 0"
    QF, KF, SXA, SMA, BX, BM, HLF, OA, LA = L2, L3, QA, QA + 4, KA, A0 + 12, L3 + 6, L1, L0
    def cnt(r):
        if meas: A(f"s_add_u32 s{r}, s{r}, 1")
    def delay(n):
        while n > 0: A(f"s_nop {min(n,16)-1}"); n -= 16
    def bound(again):
        A(f"s_add_u32 s{sSPIN}, s{sSPIN}, 1"); A(f"s_cmp_lt_u32 s{sSPIN}, {spinmax}"); A(f"s_cbranch_scc1 {again}")
    def need_kv(nm):
        if cfg.get("alone"): return
        A(f"s_bitcmp1_b64 {s(sKM,2)}, s{sT0}"); A(f"s_cbranch_scc0 {lab(nm)}"); A.label(lab(nm + "d"))
    for x in kvn[1:] + win + winz: A(x)
    A(f"s_mov_b32 s{sSPIN}, 0"); A(f"s_mov_b32 s{sTAG}, 0"); A(f"v_mov_b32 {v(vSEN)}, -1")
    A(f"v_mov_b64 {v(ONE,2)}, {s(sONE,2)}"); A(f"v_mov_b64 {v(ONE+2,2)}, {s(sONE,2)}"); A(zero(VB)); A(zero(VB + 2))
    A(f"s_mov_b32 s{sLD2}, {MEM_OFF + w*2048 - X}"); A(f"s_add_u32 s{sST1b}, s{sST1}, 4096")
    A(f"s_lshl_b32 s{sKF}, s{sH}, 8"); A(f"s_add_u32 s{sKF}, s{sKF}, {KVF - (X >> 2)}")
    A(f"s_mov_b32 s{sT0}, 0"); need_kv("kv0"); A(f"s_mov_b32 s{sT0}, 1"); need_kv("kv1")
    for x in kxl + vxl + kvn + wint: A(x)
    SL, RA = A0, A0 + 4
    sal = [f"s_add_u32 s{sSTEP}, s{sSTEP}, 1", f"s_and_b32 s{sT0}, s{sSTEP}, 3", f"s_lshl_b32 s{sT0}, s{sT0}, 13", f"s_add_u32 s{sT1}, s{sPUB}, s{sT0}",
           f"s_add_u32 s{sLD2}, s{sT0}, {MEM_OFF + w*2048 - X}", f"s_xor_b32 s{sRS2}, s{sT1}, 16384"]
    sal2 = [f"s_xor_b32 s{sST1}, s{sST1}, {256<<10}", f"s_add_u32 s{sST1b}, s{sST1}, 4096", f"s_add_u32 s{sKVM}, s{sKVM}, 8192",
            f"s_cmp_ge_u32 s{sSTEP}, {NSEG-2}", f"s_cselect_b32 s{sHI}, 0, s{sHI}", f"s_cselect_b32 s{sKV}, 0x40000000, s{sKV}"] + kvn
    tail = [f"ds_read_b128 {v(SL,4)}, {v(vL16)} offset:{SEL}"] + sal + sal2
    oth = list(win)
    for x in winz: tail += [x] + oth[:1]; oth = oth[1:]
    tail += oth
    ta, tb = cfg.get("tp", [(0, 99)] * 4)[w]
    assert ta + tb >= 7
    A.wait(vm=0, lg=0)
    A.label(lab("step"))
    ST(0)
    H2 = A0 + 24
    g2 = cfg.get("g2", [[]] * 4)[w]; D2 = len(g2) + 1
    pcs = [(H2 + 4 * n, 2 * w + n) for n in range(2)]
    NP = len(pcs); k0_ = pcs[0][1] if pcs else 0
    def iss2():
        A.vmq = []
        for r, kk in pcs: A(f"buffer_load_dwordx4 {v(r,4)}, {v(vL16)}, {s(sWS,4)}, s{sLD2} offen offset:{(kk - k0_)*1024} sc1")
        A.vmq = []
    def use2(after):
        for n, (r, kk) in enumerate(pcs):
            A.wait(vm=after + NP - 1 - n)
            if n == 0: A(f"v_max3_u32 {v(vJ0)}, {v(r)}, {v(r+1)}, {v(r+2)}"); A(f"v_max_u32 {v(vJ0)}, {v(vJ0)}, {v(r+3)}")
            else: A(f"v_max3_u32 {v(vJ0)}, {v(vJ0)}, {v(r)}, {v(r+1)}"); A(f"v_max3_u32 {v(vJ0)}, {v(vJ0)}, {v(r+2)}, {v(r+3)}")
            if n == NP - 1: A(f"v_cmp_eq_u32 vcc, -1, {v(vJ0)}")
            A(f"ds_write_b128 {v(vL16)}, {v(r,4)} offset:{MEMB + kk*1024}")
    if NP:
        iss2()
        for k, g in enumerate(g2): delay(g); iss2()
        use2(NP * (D2 - 1)); A(f"s_cbranch_vccnz {lab('r2')}")
    A.label(lab("ok2")); ST(1)
    if D2 > 1: A.vmq = [({("v", H2 + r) for r in range(8)}, None, False)]
    A.wait(lg=0); A("s_barrier"); ST(2)
    ar = lambda kk: f"ds_read_b128 {v(A0+4*kk,4)}, {v(vL16)} offset:{MEMB + kk*1024}"
    A(ar(0)); A(ar(1)); A(ar(2))
    def preadd(base, t, ldsoff, tag=None):
        r = base + 4 * t
        sc_ = [f"v_mul_f32 {v(r+n)}, s{sC2}, {v(r+n)}" for n in range(2)] if base == QA else []
        return [ad(r, r, r + 2), ad(r + 1, r + 1, r + 3)] + sc_ + [cv(r, r), (f"ds_write_b32 {v(vKW)}, {v(r)} offset:{ldsoff + t*256}", tag)]
    q0, q1, k0, k1 = preadd(QA, 0, 0), preadd(QA, 1, 0, "q"), preadd(KA, 0, 512), preadd(KA, 1, 512, "k")
    qr = [trr(QF + 4 * m + 2 * t, m, t, 0) for m in range(2) for t in range(2)]
    kr = [trr(KF + 4 * m + 2 * t, m, t, 512) for m in range(2) for t in range(2)]
    sx = [f"v_mfma_f32_16x16x32_bf16 {v(SXA,4)}, {v(KX+4*m,4)}, {v(QF+4*m,4)}, {v(SXA,4) if m else 0}" for m in range(2)]
    ss = [f"v_mfma_f32_16x16x32_bf16 {v(SMA,4)}, {v(KF+4*m,4)}, {v(QF+4*m,4)}, {v(SMA,4) if m else 0}" for m in range(2)]
    vs = [sm("v", t, kk) for t in range(2) for kk in range(8)]
    quad = lambda r: [f"v_add_f32_dpp {v(r+n)}, {v(r+2+n)}, {v(r+n)} quad_perm:[2,3,0,1] row_mask:0xf bank_mask:0xf" for n in range(2)]
    ex = lambda r: [f"v_exp_f32 {v(r+2)}, {v(r)}", f"v_exp_f32 {v(r+3)}, {v(r+1)}"]
    xq, mq = quad(SXA), quad(SMA)
    xe = ex(SXA) + [cv(SXA + 2, SXA + 2), (f"ds_write_b32 {v(vPW)}, {v(SXA+2)}", "p")]
    me = ex(SMA) + [cv(BM, SMA + 2), cv(BM + 1, SMA + 2)]
    vc = [cv(VB + n, VA + 2 * n) for n in range(4)]
    bxr = f"ds_read_b128 {v(BX,4)}, {v(vOR)} offset:{PX}"
    mx = [f"v_mfma_f32_16x16x32_bf16 {v(d,4)}, {v(x,4)}, {v(BX,4)}, 0" for d, x in ((LA, ONE), (OA, VX), (OA + 4, VX + 4))]
    mm = [f"v_mfma_f32_16x16x32_bf16 {v(d,4)}, {v(x,4)}, {v(b,4)}, {v(d,4)}" for d, x, b in ((LA, HLF, BM), (OA, VB, BM), (OA + 4, VB, BM - 2))]
    z = [zero(A0 + 2 * n) for n in range(8)]
    ow = sum([wr(("o", 3, sl)) for sl in range(4)], [])
    mf = [sm("q", t, kk) for kk in range(3) for t in range(2)] + [sm("q", t, kk) for t in range(2) for kk in range(3, 8)]
    mf += [sm("k", 0, kk) for kk in (3, 0, 1, 4, 2, 5, 6, 7)] + [sm("k", 1, kk) for kk in (3, 4, 5, 6, 7, 0, 1, 2)] + sx + vs[0:9] + ss + vs[9:16]
    slot = {}
    def at(i, x):
        while i in slot: i += 1
        slot[i] = x; return i
    for i in range(5): at(i, [ar(3 + i)])
    at(10, []); at(15, [])
    at(17, [q0[5]]); at(22, [q1[5]]); at(26, [bar("q")]); at(27, [qr[0], qr[1]]); at(28, [qr[2]]); at(29, [qr[3]]); at(30, [k0[3]])
    for e, x in zip(cfg.get("vp", [[-1, 5], [-1, 6], [-1, 7], [-1, 8]])[w], [touch, pub]):
        if e < 0: A(x)
        else: assert at(e, [x]) == e
    for f, e in ((("k",0,0), 5), (("k",0,1), 5), (("k",0,2), 5), (("k",1,0), 6), (("k",1,1), 18), (("k",1,2), 19)):
        for x in wr(f): at(e, [x])
    fill = {i: list(x) for i, x in slot.items()}
    def va(i, *x): fill[i] = fill.get(i, []) + list(x)
    va(1, pw(mf[2], mf[4])); va(5, pw(mf[7])); va(7, pw(mf[9])); va(15, pw(mf[18])); va(16, pw(mf[20])); va(24, pw(mf[31]))
    for i, e in enumerate((10, 11, 23, 24)): va(e, zero(VA + 2 * i))
    for i in range(5): va(12 + i, q0[i]); va(17 + i, q1[i])
    for i, e in enumerate((25, 28, 29)): va(e, k0[i])
    va(33, k1[0], k1[1], k1[2]); va(34, k1[3])
    va(35, xq[0]); va(36, xq[1]); va(37, xe[0]); va(38, bar("k")); va(39, kr[0], kr[1]); va(40, kr[2], xe[1]); va(41, kr[3], xe[2])
    va(42, xe[3]); va(43, vc[0]); va(44, vc[1], f"v_mov_b64 {v(HLF,2)}, {s(sHLF,2)}"); va(45, z[0])
    va(46, bar("p"), mq[0]); va(47, bxr, mq[1]); va(48, ow[0], me[0]); va(49, ow[1], me[1]); va(50, ow[2], z[7]); va(51, pw(mx[0]), me[2], me[3])
    for e, x in zip(cfg.get("kp", [[35, 45], [36, 43], [37, 45], [36, 43]])[w], kxl): fill[e] = [x] + fill[e]
    if cfg.get("vmprobe2"): va(31, lambda: ST("pa"), lambda: A.wait(vm=0), lambda: ST("pb"))
    if cfg.get("show"): print(w, {i: len(x) for i, x in sorted(fill.items())})
    weave(mf, fill, "q")
    A.label(lab("sm"))
    OF = A0 + 16
    pm = lambda r: f"v_pk_mul_f32 {v(r,2)}, {v(r,2)}, {v(vLa,2)} op_sel_hi:[1,0]"
    ml = lambda r: f"v_mul_f32 {v(r)}, {v(r)}, {v(vLa)}"
    weave([mx[0], mm[0], mx[1], mm[1], mx[2], mm[2]],
          {0: [z[5], z[1]], 1: [vc[2], vc[3]], 2: [z[2], z[3]], 3: [f"v_rcp_f32 {v(vLa)}, {v(LA)}"],
           4: [f"v_subrev_u32 {v(vJ0)}, s{sLO}, {v(LA)}", f"v_cmp_le_u32 vcc, s{sHI}, {v(vJ0)}"],
           5: [ml(OA), ml(OA + 1), ml(OA + 2), ml(OA + 3), cv(OF, OA), cv(OF + 1, OA + 2), z[4], z[6]]}, "pv")
    A(pm(OA + 4)); A(pm(OA + 6)); A(cv(OF + 2, OA + 4)); A(cv(OF + 3, OA + 6))
    if cfg.get("o128"): A(f"ds_write_b128 {v(vL16)}, {v(OF,4)} offset:{OX + w*1024}", tag="o")
    else:
        for n in range(2): A(f"ds_write_b64 {v(vL16)}, {v(OF+2*n,2)} offset:{OX + w*1024 + 8*n}", tag="o")
    ST("ow")
    wo = lambda i, sl: f"v_smfmac_f32_16x16x64_bf16 {v(A0+4*i,4)}, {v(OF+4*sl,4)}, {W(('o',i,sl))}, {v(vIDX)}"
    orr = [f"ds_read_b128 {v(OF+4*sl,4)}, {v(vOR)} offset:{OX + ((w+sl)&3)*1024}" for sl in range(4)]
    H1 = [A0 + 24, A0 + 8]
    A(orr[0]); A(f"s_and_b64 vcc, vcc, {s(sMSK,2)}"); A(f"s_cbranch_scc1 {lab('mx')}")
    A.label(lab("mxd"))
    if cfg.get("vmprobe"): ST("pa"); A.wait(vm=0); ST("pb")
    vq = cfg.get("vq", [[-1, 3]] * 4)[w]
    pv = lambda n: [x for x, e in zip(vxl, vq) if e == n]
    for x in pv(-1): A(x)
    A.wait_tag("o"); A("s_barrier"); ST("obar")
    A(orr[1]); A(orr[2])
    no = cfg.get("no", 3)
    mf = [wo(i, 0) for i in range(no)] + sum([[wo(i, sl) for sl in range(1 if i < no else 0, 4)] for i in range(4)], [])
    def iss1(k):
        for n in range(2): A(f"buffer_load_dwordx4 {v(H1[k]+4*n,4)}, {v(vL16)}, {s(sWS,4)}, s{sLD1} offen offset:{n*1024} sc1")
    def out(i):
        r = A0 + 4 * i
        return [cv(r, r), cv(r + 1, r + 2), f"v_and_or_b32 {v(r)}, {v(r)}, -2, s{sTAG}",
                f"buffer_store_dwordx2 {v(r,2)}, {v(vS1)}, {s(sWS,4)}, s{sST1b if i>>1 else sST1} offen offset:{(i&1)*2048} {sc}"]
    o0, o1, o2, o3 = [out(i) for i in range(4)]
    last = [mf.index(wo(i, 3)) for i in range(4)]
    fill = {0: [orr[3]], 1: [ow[3]], 2: [ow[4]], 3: [ow[5]], 4: [ow[6]]}
    eo = cfg.get("eo", [1, 2, 2])
    va(last[0] + eo[0], *o0); va(last[0] + 2, ow[7]); va(last[1] + eo[1], *o1); va(last[2], pw(mf[-1])); va(last[2] + eo[2], *o2)
    for n in range(8): va(n, *pv(n))
    weave(mf, fill, "o")
    for x in o3: A(x)
    ST(7)
    for x in tail[:ta]: A(x)
    x1 = cfg.get("x1", [[0]] * 4)[w]; D1 = len(x1)
    for k, n in enumerate(x1):
        delay(n)
        if k == 0: ST("i1")
        iss1(k)
    for x in tail[ta:ta + tb]: A(x)
    if cfg.get("trace"):
        A.wait(lg=0)
        for n in range(8): A(f"v_writelane_b32 {v(vLa)}, s{70+2*n}, {n}")
        A(f"s_lshl_b32 s{sT0}, s{sH}, 6"); A(f"s_add_u32 s{sT0}, s{sT0}, s{sSTEP}"); A(f"s_lshl_b32 s{sT0}, s{sT0}, 10"); A(f"s_add_u32 s{sT0}, s{sT0}, {(201 << 20) + w*256 - (X >> 2)}")
        A(f"v_lshrrev_b32 {v(vJ0)}, 2, {v(vL16)}"); A(f"buffer_store_dword {v(vLa)}, {v(vJ0)}, {s(sWS,4)}, s{sT0} offen")
    A.prewait(f"v_mov_b64 {v(SL,2)}, {v(SL,2)}")
    def use1(k):
        H = H1[k]
        A(f"v_mfma_f32_16x16x32_bf16 {v(RA,4)}, {v(SL,4)}, {v(H,4)}, 0")
        A(f"v_bitop3_b32 {v(vJ0)}, {v(H)}, {v(H+2)}, s{sTAG} bitop3:0x7e")
        A(f"v_mfma_f32_16x16x32_bf16 {v(RA,4)}, {v(SL,4)}, {v(H+4,4)}, {v(RA,4)}")
        A(f"v_bitop3_b32 {v(vLb)}, {v(H+4)}, {v(H+6)}, s{sTAG} bitop3:0x7e")
        A(f"v_bitop3_b32 {v(vJ0)}, {v(vJ0)}, {v(vLb)}, 1 bitop3:0xa8")
        A(f"v_cmp_ne_u32 vcc, 0, {v(vJ0)}")
        for x in red(4): A(x)
    red = lambda rr: [f"v_add_f32_dpp {v(RA+r)}, {v(RA+r)}, {v(RA+r)} row_ror:{rr} row_mask:0xf bank_mask:0xf" for r in range(2)]
    use1(0)
    A(f"s_cbranch_vccnz {lab('r1')}"); A.label(lab("ok1")); ST("ok1")
    for x in red(8): A(x)
    A(cv(vLa, RA))
    A(f"buffer_store_dword {v(vLa)}, {v(vPUB)}, {s(sWS,4)}, s{sT1} offen {sc}")
    ST(8)
    A(f"buffer_store_dword {v(vSEN)}, {v(vPUB)}, {s(sWS,4)}, s{sRS2} offen {sc}")
    if not cfg.get("alone"): A(f"v_readlane_b32 s{sKM}, {v(vTOUCH)}, 32")
    for x in [f"s_xor_b32 s{sLD1}, s{sLD1}, {256<<10}", f"s_bfe_u32 s{sTAG}, s{sSTEP}, 0x10001"] + tail[ta + tb:] + wint: A(x)
    if not cfg.get("alone"): A(f"s_cmp_lg_u32 s{sKM}, 1"); A(f"s_cbranch_scc1 {lab('kv2')}"); A.label(lab("kv2d"))
    if meas: A(f"s_cmp_eq_u32 s{sSTEP}, 8"); A(f"s_cbranch_scc1 {lab('m8')}"); A.label(lab("m8d"))
    delay(cfg.get("d2", [0] * 4)[w])
    A(f"s_branch {lab('step')}")
    if meas:
        A.forget(); A.label(lab("m8")); A("s_memtime s[64:65]", tag="stamp"); A("s_memrealtime s[60:61]", tag="stamp")
        A("s_mov_b32 s99, 0"); A("s_mov_b32 s101, 0"); A("s_mov_b32 s100, 0"); A(f"s_branch {lab('m8d')}")
    for nm in ([] if cfg.get("alone") else ["kv0", "kv1", "kv2"]):
        A.forget(); A.label(lab(nm))
        if nm == "kv2": A(f"s_add_u32 s{sT0}, s{sSTEP}, 1"); A(f"s_cmp_ge_u32 s{sT0}, {NSEG-1}"); A(f"s_cbranch_scc1 {lab('kv2d')}"); cnt(101)
        A(f"v_lshrrev_b32 {v(vJ0)}, 2, {v(vL16)}"); A(f"buffer_load_dword {v(vJ0)}, {v(vJ0)}, {s(sWS,4)}, s{sKF} offen sc1")
        A(f"v_cmp_eq_u32 {s(sKM,2)}, 1, {v(vJ0)}"); A("s_nop 4")
        A(f"s_bitcmp1_b64 {s(sKM,2)}, s{sT0}"); A(f"s_cbranch_scc1 {lab(nm + 'd')}")
        bound(lab(nm)); A(f"s_branch {lab(nm + 'd')}")
    A.forget(); A.label(lab("r2"))
    for k in range(2):
        iss2(); cnt(99); use2(NP * (D2 - 1)); A(f"s_cbranch_vccz {lab('ok2')}")
    bound(lab("r2")); A(f"s_mov_b32 s{sGIVE}, 1"); A(f"s_branch {lab('ok2')}")
    A.forget(); A.label(lab("r1"))
    A.vmq = [({("v", H1[k] + 4 * n + r) for r in range(4)}, None, False) for k in range(1, D1) for n in range(2)]
    for k in range(D1):
        cnt(100); iss1(k); use1((k + 1) % D1); A(f"s_cbranch_vccz {lab('ok1')}")
    bound(lab("r1")); A(f"s_mov_b32 s{sGIVE}, 1"); A.wait(vm=0); A(f"s_branch {lab('ok1')}")
    A.forget(); A.label(lab("mx"))
    A("s_nop 7"); A.wait(lg=0)
    A(f"s_cmp_lg_u32 s{sHI}, 0"); A(f"s_cbranch_scc1 {lab('mx2')}")
    PK = OF + 8
    A(trr(PK, w >> 1, w & 1, 512)); A(pk(PK + 4, VA, VA + 2)); A(pk(PK + 6, VA + 4, VA + 6)); A(cv(PK + 2, PK + 4)); A(cv(PK + 3, PK + 6))
    A(f"s_and_b32 s{sT0}, s{sSTEP}, 1"); A(f"s_lshl_b32 s{sT0}, s{sT0}, 5"); A(f"s_add_u32 s{sT0}, s{sT0}, s{sH}"); A(f"s_lshl_b32 s{sT0}, s{sT0}, 12"); A(f"s_add_u32 s{sT0}, s{sT0}, {KVD_OFF + w*1024 - X}")
    A(f"buffer_store_dwordx4 {v(PK,4)}, {v(vL16)}, {s(sWS,4)}, s{sT0} offen sc1")
    A(f"s_cmp_eq_u32 s{sSTEP}, {NSEG-1}"); A(f"s_cbranch_scc1 {lab('end')}")
    A(f"s_mov_b32 s{sHI}, {120<<23:#x}"); A(f"v_cmp_le_u32 vcc, s{sHI}, {v(vJ0)}"); A("s_nop 4"); A(f"s_and_b64 vcc, vcc, {s(sMSK,2)}"); A(f"s_cbranch_scc0 {lab('mxd')}")
    A.label(lab("mx2"))
    A(f"v_max3_f32 {v(vLa)}, {v(SXA)}, {v(SXA+1)}, {v(SMA)}"); A(f"v_max_f32 {v(vLa)}, {v(vLa)}, {v(SMA+1)}"); A(f"v_mov_b32 {v(vLb)}, {v(vLa)}")
    A(f"v_permlane16_swap_b32 {v(vLa)}, {v(vLb)}"); A(f"v_max_f32 {v(vLa)}, {v(vLa)}, {v(vLb)}"); A(f"v_mov_b32 {v(vLb)}, {v(vLa)}")
    A(f"v_permlane32_swap_b32 {v(vLa)}, {v(vLb)}"); A(f"v_max_f32 {v(vLa)}, {v(vLa)}, {v(vLb)}")
    A(f"ds_write_b32 {v(vL16)}, {v(vLa)} offset:{MXB + 4*w}"); A.wait(lg=0); A("s_barrier")
    A(f"ds_read_b128 {v(LA,4)}, {v(vL16)} offset:{MXB}")
    A(f"v_max3_f32 {v(vLa)}, {v(LA)}, {v(LA+1)}, {v(LA+2)}"); A(f"v_max_f32 {v(vLa)}, {v(vLa)}, {v(LA+3)}")
    A(f"v_cmp_neq_f32 vcc, 0, {v(vLa)}")
    A(f"v_mov_b32 {v(vJ0)}, 0x1f8")
    A(f"v_cmp_class_f32 s[36:37], {v(vLa)}, {v(vJ0)}")
    A("s_nop 4"); A("s_and_b64 vcc, vcc, s[36:37]"); A(f"s_and_b64 vcc, vcc, {s(sMSK,2)}")
    A(f"s_cbranch_scc0 {lab('mxd')}")
    A(f"v_cndmask_b32 {v(vLa)}, 0, {v(vLa)}, vcc")
    for r in (SXA, SXA + 1, SMA, SMA + 1): A(f"v_sub_f32 {v(r)}, {v(r)}, {v(vLa)}")
    for x in xe + me: put(x)
    A.wait(lg=0); A("s_barrier"); A(bxr); A.wait(lg=0)
    A(f"s_branch {lab('sm')}")
    A.forget(); A.label(lab("end"))

def arrive(A, w):
    if w == 0:
        A("s_getreg_b32 s36, hwreg(HW_REG_XCC_ID, 0, 3)"); A("s_lshl_b32 s36, s36, 3"); A("s_lshl_b64 s[36:37], 1, s36")
        A("v_mov_b32 v116, s36"); A("v_mov_b32 v117, s37"); A("v_mov_b32 v118, 0")
        A("s_mov_b64 exec, 1"); A("global_atomic_add_x2 v118, v[116:117], s[6:7]"); A("s_mov_b64 exec, -1")

def meet(A, w, cfg):
    sm = cfg.get("spin", 100000)
    A(f"s_mov_b32 s{sSPIN}, 0"); A("v_mov_b32 v118, 0"); A(f"s_mov_b64 {s(sKM,2)}, 0")
    A("s_getreg_b32 s36, hwreg(HW_REG_XCC_ID, 0, 3)"); A("s_lshl_b32 s36, s36, 3"); A("s_lshl_b64 s[36:37], 32, s36")
    if not cfg.get("alone"):
        A("v_and_b32 v114, v114, v115"); A("v_cmp_ne_u32 vcc, -1, v114"); A(f"s_cbranch_vccnz Tln_{w}")
        A(f"v_cmp_eq_u32 {s(sKM,2)}, 1, {v(vJ0)}"); A(f"s_branch Tmeet2_{w}")
        A.label(f"Tln_{w}")
        A("global_load_dwordx2 v[116:117], v118, s[6:7] offset:128 sc1"); A("v_and_b32 v116, v116, v117"); A("v_cmp_ne_u32 vcc, -1, v116"); A(f"s_cbranch_vccz Tmeet_{w}")
        A(f"s_add_u32 s{sSPIN}, s{sSPIN}, 1"); A(f"s_cmp_lt_u32 s{sSPIN}, {sm}"); A(f"s_cbranch_scc1 Tln_{w}")
    A.label(f"Tmeet_{w}")
    A("global_load_dwordx2 v[116:117], v118, s[6:7] sc1")
    A.label(f"Tmeet2_{w}")
    A("v_sad_u8 v119, v116, 0, 0"); A("v_sad_u8 v119, v117, 0, v119")
    A("v_readfirstlane_b32 s38, v116"); A("v_readfirstlane_b32 s39, v117"); A("v_readfirstlane_b32 s40, v119")
    A("s_nop 3")
    if not cfg.get("force_slow"):
        A("s_cmp_eq_u64 s[36:37], s[38:39]"); A(f"s_cbranch_scc1 Tfast_{w}")
    A("s_cmp_eq_u32 s40, 32"); A(f"s_cbranch_scc1 Tslow_{w}")
    A(f"s_add_u32 s{sSPIN}, s{sSPIN}, 1"); A(f"s_cmp_lt_u32 s{sSPIN}, {sm}"); A(f"s_cbranch_scc1 Tmeet_{w}")
    A(f"s_branch Tslow_{w}")

def team(A, cfg, fin):
    global ORDER
    ORDER = cfg.get("order", "qkvo")
    cfg = dict(cfg); cfg["arrive"] = arrive
    for w in range(1, 4):
        A(f"s_cmp_eq_u32 s17, {w}"); A(f"s_cbranch_scc1 Twave_{w}")
    for w in range(4):
        A.forget(); A.label(f"Twave_{w}")
        prologue(A, w, cfg); meet(A, w, cfg)
        if cfg.get("noslow"): A.label(f"Tslow_{w}")
        for sc, nm in (("", "fast"), ("sc1", "slow"))[:1 if cfg.get("noslow") else 2]:
            A.forget(); A.label(f"T{nm}_{w}")
            if cfg.get("meas", True): A("s_memrealtime s[66:67]", tag="stamp")
            loop(A, w, cfg, sc); fin(A, w)
```

```python
import sys; sys.path.insert(0,"work")
from gen import *
import team as TM, worker as WK
NAME = "recurrent_scan__memory_aug_recurrent_mem_tr__mixer_channel_mlp__prompt"
BEST = dict(x1=[[30],[48],[20],[37]], d2=[34,30,22,14], g2=[[],[],[26],[26]], tp=[(0,99),(0,99),(99,0),(99,0)], look=3, wtouch=False,
            o128=True, vq=[[-1,1],[-1,2],[-1,3],[-1,4]], kp=[[35,45],[36,48],[37,49],[43,50]])
def kernel(cfg):
    A = Asm(cfg.get("verbose")); meas = cfg.get("meas")
    A("s_cmp_ge_u32 s2, 256"); A("s_cbranch_scc1 Lexit")
    if meas: A("s_memrealtime s[56:57]", tag="stamp")
    A("s_load_dwordx2 s[6:7], s[0:1], 104"); A("s_load_dwordx2 s[8:9], s[0:1], 112"); TM.entry_loads(A)
    A("v_lshrrev_b32 v1, 6, v0"); A("s_mov_b32 s10, 0x10000000"); A("s_mov_b32 s11, 0x20000"); A("v_readfirstlane_b32 s17, v1")
    if meas:
        for r in range(90, 102): A(f"s_mov_b32 s{r}, 0")
    A("s_and_b32 s3, s2, 7"); A("s_lshr_b32 s16, s2, 3")
    if cfg.get("cpf"):
        A("s_getpc_b64 s[4:5]"); A.label("Lpc")
        A("s_lshl_b32 s18, s16, 12"); A("v_and_b32 v2, 31, v0"); A("v_lshlrev_b32 v2, 7, v2"); A("v_add_u32 v2, s18, v2")
        A("v_min_u32 v2, Lcode_end-Lpc-4, v2"); A("s_cmp_lg_u32 s17, 3"); A("s_cbranch_scc1 Lnopf")
        A("global_load_dword v99, v2, s[4:5]"); A.label("Lnopf"); A.vmq = []
    if meas: A.wait(lg=0); A("s_mov_b32 s69, s56")
    A("s_cmp_eq_u32 s3, 0"); A("s_cbranch_scc1 Lteam")
    A("s_branch Lwork")
    A.label("Lexit"); A("s_endpgm")
    def dump(A, regs, slot):
        A.wait(vm=0, lg=0)
        for j, r in enumerate(regs): A(f"v_mov_b32 v{20+j}, s{r}")
        A(f"s_lshl_b32 s19, s2, 8"); A(f"s_add_u32 s19, s19, {slot}"); A(f"s_add_u32 s19, s19, {200<<20}")
        for j in range(4): A(f"buffer_store_dwordx4 v[{20+4*j}:{23+4*j}], off, s[8:11], s19 offset:{16*j}")
        if cfg.get("dbgout"):
            lb = A.newlabel("Ldbg"); o = 8 if slot != "s17" else 32
            A(f"s_cmp_gt_u32 s2, 1"); A(f"s_cbranch_scc1 {lb}")
            for j in range(1, 8): A(f"v_sub_u32 v{20+j}, v{20+j}, v20")
            A("v_mov_b32 v19, 0")
            if slot != "s17": A("global_store_dwordx4 v19, v[20:23], s[6:7] offset:16")
            else: A("global_store_dwordx4 v19, v[20:23], s[6:7] offset:32"); A("global_store_dwordx4 v19, v[24:27], s[6:7] offset:48")
            A.label(lb)
        A.wait(vm=0)
    A.forget(); A.label("Lteam")
    def fin(A, w):
        if meas:
            A("s_memrealtime s[88:89]"); A("s_memtime s[62:63]"); A.wait(lg=0); A("s_sub_u32 s62, s62, s64")
            dump(A, [69, 66, 60, 88, 62, 99, 100, TM.sGIVE, TM.sSPIN, 70, 72, 74, 76, 78, 80, 82], w * 64)
        A("s_endpgm")
    TM.team(A, cfg, fin)
    A.forget(); A.label("Lwork"); A.wait(lg=0)
    A("s_sub_u32 s3, s3, 1"); A("s_lshl_b32 s3, s3, 5"); A("s_add_u32 s16, s16, s3")
    WK.worker(A, cfg)
    if meas:
        A("s_lshl_b32 s17, s17, 6"); dump(A, [69, 70, 72, 74, 76, 78, 80, 82, WK.sSPIN, 84, 86, 88, 90, 92, 94, WK.sT], "s17")
    if cfg.get("diag_until"):
        A.label("Ldiag"); A("s_memrealtime s[70:71]"); A.wait(lg=0); A("s_sub_u32 s70, s70, s69"); A(f"s_cmp_lt_u32 s70, {cfg['diag_until']}"); A("s_cbranch_scc1 Ldiag")
    A("s_endpgm"); A.label("Lcode_end")
    return A.text()
def full_text(cfg):
    ref = open(f"cdna_kernels/{NAME}.s.ref").read()
    head = ref[:ref.index("; Override launch geometry")]
    t = head + "; One workgroup per CU: 32 carry the recurrence (one head each), 224 do everything that is parallel over tokens.\n"
    t += "; @launch grid=(256,1,1) block=(256,1,1) lds=163840\n"
    t += f'.amdgcn_target "amdgcn-amd-amdhsa--gfx950"\n.text\n.globl {NAME}_kernel\n.p2align 8\n.type {NAME}_kernel,@function\n{NAME}_kernel:\n'
    t += kernel(cfg)
    t += f'''.section .rodata,"a"
.p2align 6
.amdhsa_kernel {NAME}_kernel
  .amdhsa_next_free_vgpr 512
  .amdhsa_next_free_sgpr 102
  .amdhsa_accum_offset 256
  .amdhsa_group_segment_fixed_size 0
  .amdhsa_kernarg_size 120
  .amdhsa_user_sgpr_count 2
  .amdhsa_user_sgpr_kernarg_segment_ptr 1
  .amdhsa_system_sgpr_workgroup_id_x 1
.end_amdhsa_kernel
'''
    return t
if __name__ == "__main__":
    cfg = dict(BEST); cfg["meas"] = False
    if len(sys.argv) > 2: cfg.update(eval(sys.argv[2]))
    out = sys.argv[1] if len(sys.argv) > 1 else f"cdna_kernels/{NAME}.s"
    open(out, "w").write(full_text(cfg)); print("wrote", out)
```
